```python
import torch

def _softmax(x, axis=-1):
    return torch.softmax(x, dim=axis)
def _gelu(x):
    return torch.nn.functional.gelu(x, approximate="tanh")
def _silu(x):
    return torch.nn.functional.silu(x)
def _sigmoid(x):
    return torch.sigmoid(x)
def _layernorm(x, axis=-1, eps=1e-5):
    m = x.mean(dim=axis, keepdim=True)
    v = x.var(dim=axis, keepdim=True, unbiased=False)
    return (x - m) / torch.sqrt(v + eps)
def _scatter_add(tgt, idx, src, axis=0):
    return tgt.clone().index_add_(axis, idx, src)
def _segment_sum(src, seg, n):
    out = torch.zeros((n,) + src.shape[1:], dtype=src.dtype)
    return out.index_add_(0, seg, src)
def _pad(x, pw):
    flat = tuple(v for pair in reversed(pw) for v in pair)
    return torch.nn.functional.pad(x, flat)

kernel_name = 'gated_mix__ssm_conv_s4d__softmax_full_mha__prompt'

def setup_inputs():

    _w = (lambda a: (lambda t: t.to(torch.bfloat16) if t.is_floating_point() else t)(torch.as_tensor(a)))
    def _A_setup():
        Bsz, L, D, N = 1, 2048, 448, 256
        return {
            "u": _w((lambda *s: torch.randn(*s, dtype=torch.bfloat16) * 0.05)(Bsz, L, D)),
            "log_A_real": _w((lambda *s: torch.randn(*s, dtype=torch.bfloat16) * 3.2)(D, N) * 0.5),
            "A_imag": _w((lambda *s: torch.randn(*s, dtype=torch.bfloat16) * 0.05)(D, N) * 3.14),
            "C_real": _w((lambda *s: torch.randn(*s, dtype=torch.bfloat16) * 0.8)(D, N) / N ** 0.5),
            "C_imag": _w((lambda *s: torch.randn(*s, dtype=torch.bfloat16) * 0.8)(D, N) / N ** 0.5),
            "log_dt": _w((lambda *s: torch.randn(*s, dtype=torch.bfloat16) * 0.05)(D) * 0.5 - 4.0),
            "D_skip": _w((lambda *s: torch.randn(*s, dtype=torch.bfloat16) * 0.1)(D)),
        }
    _A_in = _A_setup()

    def _B_setup():
        B, S, D = 1, 2048, 448
        return {
            "x": _w((lambda *s: torch.randn(*s, dtype=torch.bfloat16) * 0.05)(B, S, D)),
            "wqkv": _w((lambda *s: torch.randn(*s, dtype=torch.bfloat16) * 0.8)(D, 3 * D)),
            "wo": _w((lambda *s: torch.randn(*s, dtype=torch.bfloat16) * 0.05)(D, D)),
        }
    _B_in = _B_setup()

    return {
        "A_u": _A_in["u"],
        "A_log_A_real": _A_in["log_A_real"],
        "A_A_imag": _A_in["A_imag"],
        "A_C_real": _A_in["C_real"],
        "A_C_imag": _A_in["C_imag"],
        "A_log_dt": _A_in["log_dt"],
        "A_D_skip": _A_in["D_skip"],
        "B_x": _B_in["x"],
        "B_wqkv": _B_in["wqkv"],
        "B_wo": _B_in["wo"],
        "gate_w": _w((lambda *s: torch.randn(*s, dtype=torch.bfloat16) * 0.05)(448) * 16.0),
    }

def reference(A_u, A_log_A_real, A_A_imag, A_C_real, A_C_imag, A_log_dt, A_D_skip, B_x, B_wqkv, B_wo, gate_w):
    def _A_ref(u, log_A_real, A_imag, C_real, C_imag, log_dt, D_skip):
        L = u.shape[1]
        dt = torch.exp(log_dt)
        A = -torch.exp(log_A_real) + 1j * A_imag
        C = (C_real + 1j * C_imag) * dt[:, None]
        pos = (lambda x, dt: x.to(dt))(torch.arange(L), log_dt.dtype)
        P = torch.exp((A * dt[:, None])[:, :, None] * pos[None, None, :])
        K = 2.0 * torch.einsum("dn,dnl->dl", C, P).real
        L2 = 2 * L
        u_t = (lambda x, *d: x.permute(*d))(u, 0, 2, 1)
        Kf = (lambda x, *a, **k: torch.fft.rfft(x.float(), *a, **k))(K, L2)
        Uf = (lambda x, *a, **k: torch.fft.rfft(x.float(), *a, **k))(u_t, L2)
        y = (lambda x, *a, **k: torch.fft.irfft(x, *a, **k).to(torch.bfloat16))(Uf * Kf[None, :, :], L2)[:, :, :L]
        y = (lambda x, *d: x.permute(*d))(y, 0, 2, 1)
        return y + u * D_skip[None, None, :]

    def _B_ref(x, wqkv, wo):
        B, S, D = x.shape
        H = 16; Dh = D // H
        qkv = (lambda x, *d: x.permute(*d))((x @ wqkv).reshape(B, S, 3, H, Dh), 2, 0, 3, 1, 4)
        q, k, v = qkv[0], qkv[1], qkv[2]
        scale = Dh ** -0.5
        scores = torch.einsum("bhqd,bhkd->bhqk", q, k) * scale
        p = _softmax(scores, axis=-1)
        o = torch.einsum("bhqk,bhkd->bhqd", p, v)
        return (lambda x, *d: x.permute(*d))(o, 0, 2, 1, 3).reshape(B, S, D) @ wo

    x = A_u
    g = _sigmoid((x * gate_w).sum(-1, keepdims=True))
    a = _A_ref(x, A_log_A_real, A_A_imag, A_C_real, A_C_imag, A_log_dt, A_D_skip)
    b = _B_ref(x, B_wqkv, B_wo)
    return g * a + (1 - g) * b
```

```python
from gen_common import *
S_TT,S_C,S_H,S_QT=32,33,52,53
def qkv(e):
    XR=128; ACC=16; XF=64; WF=80
    stamp(e,0)
    e('s_setprio 3')
    e(f's_and_b32 s{S_TT}, s{S_XCD}, 3',f's_lshl_b32 s{S_TT}, s{S_TT}, 2',f's_and_b32 s40, s{S_SLOT}, 3',f's_add_u32 s{S_TT}, s{S_TT}, s40',
      f's_lshr_b32 s{S_C}, s{S_XCD}, 2',f's_lshl_b32 s{S_C}, s{S_C}, 3',f's_lshr_b32 s40, s{S_SLOT}, 2',f's_add_u32 s{S_C}, s{S_C}, s40')
    e(f's_mov_b32 s44, s{S_W}',f's_mov_b32 s45, s{S_W+1}','s_mov_b32 s46, 1204224','s_mov_b32 s47, 0x20000')
    e(f's_lshl_b32 s40, s{S_TT}, 7',f's_lshl_b32 s41, s{S_WAVE}, 5','s_add_u32 s40, s40, s41','s_mul_i32 s40, s40, 896',
      'v_lshrrev_b32 v6, 3, v0','v_mul_u32_u24 v6, 896, v6','v_and_b32 v7, 7, v0','v_lshlrev_b32 v7, 4, v7','v_add3_u32 v104, v6, v7, s40',
      'v_add_u32 v105, 7168, v104','v_add_u32 v106, 14336, v104','v_add_u32 v107, 21504, v104')
    e(f's_lshl_b32 s41, s{S_WAVE}, 4','s_mul_i32 s41, s41, 2688',f's_mul_i32 s43, s{S_C}, 168','s_and_b32 s43, s43, -16','s_add_u32 s41, s41, s43')
    for i in range(3):
        e(f'v_add_u32 v6, {64*i}, v0','v_mul_u32_u24 v7, 0x5556, v6','v_lshrrev_b32 v7, 18, v7',
          'v_mul_u32_u24 v8, 12, v7','v_sub_u32 v6, v6, v8','v_lshlrev_b32 v6, 4, v6','v_mul_u32_u24 v7, 2688, v7',f'v_add3_u32 v{108+i}, v6, v7, s41')
    e(f's_mul_i32 s42, s{S_WAVE}, 3072','s_barrier')
    for m in range(7):
        for rb in range(4):
            e(f'global_load_dwordx4 {vr(XR+16*m+4*rb,4)}, v{104+rb}, {sp(S_X)} offset:{128*m}')
        for i in range(3):
            e(f's_add_u32 m0, s42, {W_BASE+m*12288+i*1024}',f's_mov_b32 s43, {m*172032}',
              f'buffer_load_dwordx4 v{108+i}, s[44:47], s43 offen lds')
    if PROF:
        stamp(e,11); e('s_waitcnt vmcnt(49)'); stamp(e,12); e('s_waitcnt vmcnt(45)'); stamp(e,13)
    e(f's_lshl_b32 s40, s{S_WAVE}, 12',f's_add_u32 s40, s40, {XS_BASE}',
      'v_lshrrev_b32 v6, 3, v0','v_lshlrev_b32 v6, 7, v6','v_add_u32 v6, s40, v6',
      'v_lshrrev_b32 v7, 4, v0','v_and_b32 v8, 7, v0','v_xor_b32 v9, v8, v7','v_lshlrev_b32 v8, 4, v9','v_add_u32 v8, v6, v8',
      'v_xor_b32 v9, 4, v9','v_lshlrev_b32 v9, 4, v9','v_add_u32 v9, v6, v9')
    e('v_lshrrev_b32 v6, 3, v1','v_lshlrev_b32 v6, 10, v6','v_and_b32 v7, 7, v1','v_lshlrev_b32 v7, 7, v7','v_add3_u32 v6, v6, v7, s40',
      'v_lshrrev_b32 v7, 1, v1','v_and_b32 v7, 7, v7','v_xor_b32 v7, v7, v2')
    for sp_ in range(4):
        e(f'v_xor_b32 v{10+sp_}, {2*sp_}, v7',f'v_lshlrev_b32 v{10+sp_}, 4, v{10+sp_}',f'v_add_u32 v{10+sp_}, v6, v{10+sp_}')
    e('v_lshrrev_b32 v6, 2, v0','v_and_b32 v6, 3, v6','v_lshlrev_b32 v7, 3, v2','v_add_u32 v6, v6, v7','v_mul_u32_u24 v6, 192, v6',
      'v_lshrrev_b32 v7, 4, v0','v_and_b32 v7, 1, v7','v_lshlrev_b32 v7, 5, v7','v_and_b32 v14, 3, v0','v_lshlrev_b32 v14, 3, v14',
      'v_add3_u32 v14, v14, v6, v7',f's_and_b32 s41, s{S_C}, 1','s_lshl_b32 s41, s41, 3','v_add_u32 v14, s41, v14',f'v_add_u32 v15, 49152, v14')
    e('v_cmp_eq_u32 s[54:55], 1, v2','v_cmp_le_u32 s[56:57], 28, v1')
    groups={0:(0,1,C_W0),2:(2,4,C_W1),5:(5,6,C_W2)}
    def wread(m,s,buf):
        out=[]
        for i in range(3):
            off=m*12288+i*56+s*3072; b=14
            if m>=4: off-=49152; b=15
            out.append(f'ds_read_b64_tr_b16 {vr(WF+12*buf+4*i,2)}, v{b} offset:{off}')
            out.append(f'ds_read_b64_tr_b16 {vr(WF+12*buf+4*i+2,2)}, v{b} offset:{off+768}')
        return out
    def body(orient):
        for m in range(7):
            if m in groups:
                last=groups[m][1]
                e(f's_waitcnt vmcnt({7*(6-last)})')
                arrive(e,groups[m][2])
            for rb in range(4):
                e(f'ds_write_b128 v{8+(rb&1)}, {vr(XR+16*m+4*rb,4)} offset:{rb*1024}')
            for s in range(4):
                e(f'ds_read_b128 {vr(XF+4*s,4)}, v{10+s}')
            if m in groups:
                wait_cnt(e,groups[m][2],4,6)
                if m==0: stamp(e,1)
                if m==5: stamp(e,2)
            e(*wread(m,0,0))
            for s in range(4):
                buf=s&1
                if s<3:
                    e(*wread(m,s+1,buf^1)); e('s_waitcnt lgkmcnt(6)')
                else: e('s_waitcnt lgkmcnt(0)')
                for i in range(3):
                    c=None if (m==0 and s==0) else ACC+16*i
                    if orient[i]=='T': e(mfma(ACC+16*i,WF+12*buf+4*i,XF+4*s,c))
                    else: e(mfma(ACC+16*i,XF+4*s,WF+12*buf+4*i,c))
    lT,lM,lN,lD=e.lab('QT'),e.lab('QM'),e.lab('QN'),e.lab('QD')
    e(f's_cmp_lt_u32 s{S_C}, 10',f's_cbranch_scc1 {lT}',f's_cmp_eq_u32 s{S_C}, 10',f's_cbranch_scc1 {lM}')
    body('NNN'); e(f's_branch {lD}',f'{lM}:'); body('TTN'); e(f's_branch {lD}',f'{lT}:'); body('TTT'); e(f'{lD}:')
    arrive(e,C_RING); stamp(e,3)
    e('v_mov_b32 v104, 0','v_mov_b32 v105, 0x3f803f80','v_mov_b32 v106, 0x3f80',
      'v_cmp_eq_u32 vcc, 28, v1','v_cndmask_b32 v107, v104, v105, vcc',
      f's_lshl_b32 s40, s{S_TT}, 2',f's_add_u32 s40, s40, s{S_WAVE}','s_lshl_b32 s40, s40, 11',f's_add_u32 s40, s40, {QKV_OFF}',
      'v_lshlrev_b32 v108, 4, v0','v_add_u32 v108, s40, v108','s_nop 7','s_nop 3')
    for i in range(3):
        A=ACC+16*i; P=64+8*i
        lq,lk,lv,ld=e.lab('q'),e.lab('k'),e.lab('v'),e.lab('d')
        e(f's_mul_i32 s41, s{S_C}, 3',f's_add_u32 s41, s41, {i}','s_lshr_b32 s42, s41, 4','s_lshl_b32 s43, s41, 17',
          f'v_add_u32 v109, s43, v108','s_cmp_eq_u32 s42, 0',f's_cbranch_scc0 {lk}')
        for r in range(16): e(f'v_mul_f32 v{A+r}, 0x3e8b97f6, v{A+r}')
        e(f'{lk}:')
        for j in range(8): e(f'v_cvt_pk_bf16_f32 v{P+j}, v{A+2*j}, v{A+2*j+1}')
        e('s_cmp_eq_u32 s42, 2',f's_cbranch_scc1 {lv}','s_cmp_eq_u32 s42, 0',f's_cbranch_scc1 {lq}',
          f'v_cndmask_b32 v{P+6}, v{P+6}, v105, s[54:55]',f'v_cndmask_b32 v{P+7}, v{P+7}, v106, s[54:55]',f's_branch {ld}',
          f'{lq}:',f'v_cndmask_b32 v{P+6}, v{P+6}, v104, s[54:55]',f'v_cndmask_b32 v{P+7}, v{P+7}, v104, s[54:55]',f's_branch {ld}',f'{lv}:')
        for j in range(8): e(f'v_cndmask_b32 v{P+j}, v{P+j}, v107, s[56:57]')
        e(f'{ld}:',f'global_store_dwordx4 v109, {vr(P,4)}, {sp(S_WS)} sc1',f'global_store_dwordx4 v109, {vr(P+4,4)}, {sp(S_WS)} offset:1024 sc1','s_nop 1')
    get_nonce(e)
    sk=e.lab('sk')
    e('s_waitcnt vmcnt(0)')
    arrive_rtn(e,C_QD,6,3,sk)
    e(f's_mul_i32 s41, s{S_C}, 3','v_add_u32 v6, s41, v0','v_and_b32 v7, 15, v6','v_lshlrev_b32 v7, 9, v7','v_lshrrev_b32 v6, 4, v6','v_lshlrev_b32 v6, 7, v6',
      f's_lshl_b32 s41, s{S_TT}, 3',f's_add_u32 s41, s41, {QFLG}','v_add3_u32 v6, v6, v7, s41',f'v_mov_b32 v8, s{S_N}',f'v_mov_b32 v9, s{S_N2}',
      's_mov_b64 exec, 7',f'global_store_dwordx2 v6, v[8:9], {sp(S_WS)} sc1','s_mov_b64 exec, -1',f'{sk}:')

def attn(e):
    Q=16; O=48; S=112; P=144; KV=160
    VK,VV,VKM=8,9,10
    S_FB,S_RT,S_LP=58,59,60
    e(f's_lshl_b32 s{S_H}, s{S_XCD}, 1',f's_lshr_b32 s40, s{S_SLOT}, 4',f's_add_u32 s{S_H}, s{S_H}, s40',f's_and_b32 s{S_QT}, s{S_SLOT}, 15',
      f's_mov_b32 s{S_FB}, 0',f's_mov_b32 s{S_RT}, 4')
    e(f's_lshl_b32 s40, s{S_H}, 9',f's_add_u32 s40, s40, {QFLG}','v_lshlrev_b32 v6, 3, v0','v_add_u32 v6, 128, v6',
      f's_lshl_b32 s41, s{S_QT}, 3','v_mov_b32 v7, s41','v_cmp_gt_u32 vcc, 32, v0','v_cndmask_b32 v6, v7, v6, vcc','v_add_u32 v6, s40, v6')
    e(f's_lshl_b32 s40, s{S_H}, 17',f's_add_u32 s40, s40, {QKV_OFF}',f's_lshl_b32 s41, s{S_QT}, 13','s_add_u32 s41, s41, s40',
      'v_lshlrev_b32 v7, 4, v0','v_add_u32 v11, s41, v7','v_add_u32 v12, 4096, v11',
      f's_lshl_b32 s41, s{S_WAVE}, 15','s_add_u32 s41, s41, s40',f's_add_u32 s61, s41, {16<<17}')
    for r in range(64): e(f'v_mov_b32 v{O+r}, 0')
    stamp(e,4)
    poll_flags(e,6,224,1)
    stamp(e,5)
    for i in range(4):
        for c in range(2): e(f'global_load_dwordx4 {vr(Q+8*i+4*c,4)}, v{11+i//2}, {sp(S_WS)} offset:{(i&1)*2048+c*1024} sc1')
    e('RERUN:')
    e('v_lshlrev_b32 v7, 4, v0',f'v_add_u32 v{VK}, s61, v7',f'v_add_u32 v{VKM}, {15*2048}, v{VK}')
    def loadkv(slot):
        b=KV+16*slot
        e(f'v_add_u32 v{VV}, {16<<17}, v{VK}',
          f'global_load_dwordx4 {vr(b,4)}, v{VK}, {sp(S_WS)} sc1',f'global_load_dwordx4 {vr(b+4,4)}, v{VK}, {sp(S_WS)} offset:1024 sc1',
          f'global_load_dwordx4 {vr(b+8,4)}, v{VV}, {sp(S_WS)} sc1',f'global_load_dwordx4 {vr(b+12,4)}, v{VV}, {sp(S_WS)} offset:1024 sc1',
          f'v_add_u32 v{VK}, 2048, v{VK}',f'v_min_u32 v{VK}, v{VK}, v{VKM}')
    for sl in range(3): loadkv(sl)
    for r in range(8): e(f'v_mov_b32 v{KV+48+8+r}, 0',f'v_mov_b32 v{P+8+r}, 0')
    e('s_waitcnt vmcnt(8)')
    e(mfma(S,KV,Q),mfma(S,KV+4,Q+4,S),'s_nop 7','s_nop 7')
    stamp(e,6); stampc(e,9)
    e(f's_mov_b32 s{S_LP}, 4','ALOOP:')
    for kt in range(4):
        for i in range(4):
            n=kt*4+i; cur=n&1; nx=cur^1
            Sc=S+16*cur; Sn=S+16*nx; Pc=P+8*cur; Pp=P+8*nx
            if i<3: kb=KV+16*kt; qb=Q+8*(i+1)
            else: kb=KV+16*((kt+1)&3); qb=Q
            if i>0: vb=KV+16*kt+8; ob=O+16*(i-1)
            else: vb=KV+16*((kt+3)&3)+8; ob=O+48
            M=[mfma(Sn,kb,qb),mfma(Sn,kb+4,qb+4,Sn),mfma(ob,vb,Pp,ob),mfma(ob,vb+4,Pp+4,ob)]
            if i==3: e('s_waitcnt vmcnt(8)')
            ex=[f'v_exp_f32 v{Sc+r}, v{Sc+r}' for r in range(16)]
            cv=[f'v_cvt_pk_bf16_f32 v{Pc+j}, v{Sc+2*j}, v{Sc+2*j+1}' for j in range(8)]
            e(M[0],ex[0],ex[1],ex[2],ex[3],cv[0],M[2],ex[4],ex[5],cv[1],ex[6],ex[7],cv[2],M[1],ex[8],ex[9],cv[3],ex[10],ex[11],cv[4],M[3],
              ex[12],ex[13],cv[5],ex[14],ex[15],cv[6],'s_nop 0',cv[7])
            if i==0: loadkv((kt+3)&3)
    e(f's_sub_u32 s{S_LP}, s{S_LP}, 1',f's_cmp_lg_u32 s{S_LP}, 0','s_cbranch_scc1 ALOOP')
    e(mfma(O+48,KV+48+8,P+8,O+48),mfma(O+48,KV+48+12,P+12,O+48),'s_waitcnt vmcnt(0)')
    stamp(e,7); stampc(e,10)
    e(f's_lshl_b32 s40, s{S_WAVE}, 12','v_lshlrev_b32 v7, 4, v0',f'v_add_u32 v6, s40, v7',f's_lshl_b32 s41, s{S_WAVE}, 14','v_add_u32 v11, s41, v7','s_nop 7')
    wait_cnt(e,C_S5,4,12,2)
    for i in range(4):
        for q in range(4): e(f'ds_write_b128 v6, {vr(O+16*i+4*q,4)} offset:{RED_BASE+i*16384+q*1024}')
    e('s_waitcnt lgkmcnt(0)'); arrive(e,C_RED); wait_cnt(e,C_RED,f's{S_RT}',13)
    for s_ in range(4):
        for q in range(4): e(f'ds_read_b128 {vr(O+16*s_+4*q,4)}, v11 offset:{RED_BASE+s_*4096+q*1024}')
    for i in range(4):
        for s_ in range(4): e(f'ds_read_b32 v{S+4*i+s_}, v7 offset:{RED_BASE+i*16384+s_*4096+3072}')
    e('s_waitcnt lgkmcnt(0)')
    for r in range(16): e(f'v_add_f32 v{O+r}, v{O+r}, v{O+16+r}',f'v_add_f32 v{O+32+r}, v{O+32+r}, v{O+48+r}')
    for r in range(16): e(f'v_add_f32 v{O+r}, v{O+r}, v{O+32+r}')
    e(f's_mov_b64 s[62:63], 0')
    for i in range(4):
        b=S+4*i
        e(f'v_add_f32 v{b}, v{b}, v{b+1}',f'v_add_f32 v{b+2}, v{b+2}, v{b+3}',f'v_add_f32 v{b}, v{b}, v{b+2}',
          f'v_cmp_nle_f32 vcc, 0x2b800000, v{b}','s_or_b64 s[62:63], s[62:63], vcc',f'v_cmp_nge_f32 vcc, 0x53800000, v{b}','s_or_b64 s[62:63], s[62:63], vcc')
    e('s_and_b64 s[62:63], s[62:63], s[54:55]',f's_add_u32 s{S_RT}, s{S_RT}, 4')
    e(f's_cmp_eq_u32 s{S_FB}, 0','s_cselect_b64 s[62:63], s[62:63], 0','s_cmp_lg_u64 s[62:63], 0','s_cbranch_scc1 FALLBACK')
    e(f'v_mov_b32 v12, v{O+12}',f'v_mov_b32 v13, v{O+12}','s_nop 1','v_permlane32_swap_b32 v12, v13','s_nop 1','v_rcp_f32 v13, v13','s_nop 0')
    for r in range(16): e(f'v_mul_f32 v{O+r}, v{O+r}, v13')
    for j in range(8): e(f'v_cvt_pk_bf16_f32 v{P+j}, v{O+2*j}, v{O+2*j+1}')
    e('v_mov_b32 v12, 0',f'v_cndmask_b32 v{P+6}, v{P+6}, v12, s[54:55]',f'v_cndmask_b32 v{P+7}, v{P+7}, v12, s[54:55]')
    e(f's_lshl_b32 s40, s{S_QT}, 2',f's_add_u32 s40, s40, s{S_WAVE}','s_lshl_b32 s40, s40, 15',f's_lshl_b32 s41, s{S_H}, 11','s_add_u32 s40, s40, s41',
      f's_add_u32 s40, s40, {O_OFF}','v_add_u32 v6, s40, v7',
      f'global_store_dwordx4 v6, {vr(P,4)}, {sp(S_WS)} sc1',f'global_store_dwordx4 v6, {vr(P+4,4)}, {sp(S_WS)} offset:1024 sc1','s_waitcnt vmcnt(0)')
    sk=e.lab('sk')
    arrive_rtn(e,C_OD,12,3,sk)
    e(f's_lshl_b32 s40, s{S_QT}, 7',f's_lshl_b32 s41, s{S_H}, 3','s_add_u32 s40, s40, s41',f's_add_u32 s40, s40, {OFLG}','v_mov_b32 v6, s40',
      f'v_mov_b32 v8, s{S_N}',f'v_mov_b32 v9, s{S_N2}','s_mov_b64 exec, 1',f'global_store_dwordx2 v6, v[8:9], {sp(S_WS)} sc1','s_mov_b64 exec, -1',f'{sk}:')
    stamp(e,8); dump_stamps(e,14,0)
    e('s_barrier','s_endpgm')
    e('FALLBACK:',f's_mov_b32 s{S_FB}, 1','v_lshlrev_b32 v7, 4, v0',f'v_add_u32 v{VK}, s61, v7',f's_mov_b32 s{S_LP}, 16')
    for i in range(4): e(f'v_mov_b32 v{P+i}, 0xff7fffff')
    e('FBL:',f'global_load_dwordx4 {vr(KV,4)}, v{VK}, {sp(S_WS)} sc1',f'global_load_dwordx4 {vr(KV+4,4)}, v{VK}, {sp(S_WS)} offset:1024 sc1',
      f'v_add_u32 v{VK}, 2048, v{VK}','s_waitcnt vmcnt(0)')
    for i in range(4):
        e(mfma(S,KV,Q+8*i),mfma(S,KV+4,Q+8*i+4,S),'s_nop 7','s_nop 7','s_nop 3')
        for r in range(0,16,2): e(f'v_max3_f32 v{P+i}, v{S+r}, v{S+r+1}, v{P+i}')
    e(f's_sub_u32 s{S_LP}, s{S_LP}, 1',f's_cmp_lg_u32 s{S_LP}, 0','s_cbranch_scc1 FBL')
    e(f's_lshl_b32 s40, s{S_WAVE}, 10','v_lshlrev_b32 v6, 2, v0','v_add_u32 v11, s40, v6')
    wait_lab=None
    arrive(e,C_FB); wait_cnt(e,C_FB,4,13)
    for i in range(4): e(f'ds_write_b32 v11, v{P+i} offset:{i*256}')
    e('s_waitcnt lgkmcnt(0)'); arrive(e,C_FB); wait_cnt(e,C_FB,8,13)
    e('v_xor_b32 v12, 128, v6')
    for i in range(4):
        for s_ in range(4):
            e(f'ds_read_b32 v{S+8*i+2*s_}, v6 offset:{s_*1024+i*256}',f'ds_read_b32 v{S+8*i+2*s_+1}, v12 offset:{s_*1024+i*256}')
    e('s_waitcnt lgkmcnt(0)'); arrive(e,C_FB); wait_cnt(e,C_FB,12,13)
    for i in range(4):
        b=S+8*i
        e(f'v_max3_f32 v{b}, v{b}, v{b+1}, v{b+2}',f'v_max3_f32 v{b}, v{b}, v{b+3}, v{b+4}',f'v_max3_f32 v{b}, v{b}, v{b+5}, v{b+6}',f'v_max_f32 v{b}, v{b}, v{b+7}',
          f'v_sub_f32 v{b}, 0, v{b}',
          f'v_cvt_pk_bf16_f32 v{b+1}, v{b}, v{b}',f'v_and_b32 v{b+1}, 0xffff0000, v{b+1}',f'v_sub_f32 v{b+2}, v{b}, v{b+1}',
          f'v_cvt_pk_bf16_f32 v{b+3}, v{b+2}, v{b+2}',f'v_and_b32 v{b+3}, 0xffff0000, v{b+3}',f'v_sub_f32 v{b+4}, v{b+2}, v{b+3}',
          f'v_cvt_pk_bf16_f32 v{b+5}, v{b+1}, v{b+3}',f'v_cvt_pk_bf16_f32 v{b+6}, v{b+4}, 0',
          f'v_cndmask_b32 v{Q+8*i+6}, v{Q+8*i+6}, v{b+5}, s[54:55]',f'v_cndmask_b32 v{Q+8*i+7}, v{Q+8*i+7}, v{b+6}, s[54:55]')
    for r in range(64): e(f'v_mov_b32 v{O+r}, 0')
    e('s_branch RERUN')
```

```python
KN='gated_mix__ssm_conv_s4d__softmax_full_mha__prompt_kernel'
class E:
    def __init__(s): s.L=[]; s.n=0
    def __call__(s,*ls):
        for l in ls:
            for x in l.split('\n'):
                x=x.strip()
                if x: s.L.append(x)
    def lab(s,p='L'):
        s.n+=1; return f'{p}_{s.n}'
def vr(a,n): return f'v[{a}:{a+n-1}]' if n>1 else f'v{a}'
def mfma(d,a,b,c=None):
    cs='0' if c is None else vr(c,16)
    return f'v_mfma_f32_32x32x16_bf16 {vr(d,16)}, {vr(a,4)}, {vr(b,4)}, {cs}'
QFLG=4096; OFLG=16384; AFLG=20480
QKV_OFF=1<<20; O_OFF=8<<20; AT_OFF=12<<20
W_BASE=0; XS_BASE=86016
SCR_BASE=118784
CNT=155648
MISC=CNT+64
RED_BASE=0
KC_BASE=65536
UT_BASE=75104
T_BASE=85504
T_CH=35072
T_OFF=[0,273,549,825,1101,1365,1641,1917]
LDS_SIZE=163840
C_W0,C_W1,C_W2,C_RING,C_QD,C_RED,C_OD,C_S0,C_S1,C_S2,C_S3,C_S4,C_AD,C_FB,C_S5,C_S6=range(16)
S_X,S_LA,S_AI,S_CR,S_CI,S_DT,S_DS,S_BX,S_W,S_WO,S_GW,S_OUT,S_DBG,S_WS=[4+2*i for i in range(14)]
S_WAVE=3; S_XCD=34; S_SLOT=35; S_SPIN=36; S_N=37; S_N2=38; S_T=39
V_LANE,V_L31,V_HH,V_X,V_CNT,V_ONE=0,1,2,3,4,5
def sp(a): return f's[{a}:{a+1}]'
def arrive(e,cid):
    e('s_mov_b64 exec, 1',f'ds_add_u32 v{V_CNT}, v{V_ONE} offset:{4*cid}','s_mov_b64 exec, -1')
def arrive_rtn(e,cid,vt,last,lab_skip):
    e('s_mov_b64 exec, 1',f'ds_add_rtn_u32 v{vt}, v{V_CNT}, v{V_ONE} offset:{4*cid}','s_mov_b64 exec, -1','s_waitcnt lgkmcnt(0)',
      f'v_readfirstlane_b32 s{S_T}, v{vt}',f's_cmp_eq_u32 s{S_T}, {last}',f's_cbranch_scc0 {lab_skip}')
def wait_cnt(e,cid,target,vt,sleep=0):
    l=e.lab('W'); d=e.lab('D')
    tg=target if isinstance(target,str) else str(target)
    e(f'{l}:',f'ds_read_b32 v{vt}, v{V_CNT} offset:{4*cid}','s_waitcnt lgkmcnt(0)',f'v_readfirstlane_b32 s{S_T}, v{vt}',
      f's_cmp_ge_u32 s{S_T}, {tg}',f's_cbranch_scc1 {d}')
    if sleep: e(f's_sleep {sleep}')
    e(f's_sub_u32 s{S_SPIN}, s{S_SPIN}, 1',f's_cbranch_scc0 {l}',f's_mov_b32 s{S_SPIN}, 0',f'{d}:')
def poll_flags(e,vaddr,vt,sleep=0):
    l=e.lab('P'); d=e.lab('D')
    e(f'{l}:',f'global_load_dwordx2 {vr(vt,2)}, v{vaddr}, {sp(S_WS)} sc1','s_waitcnt vmcnt(0)',
      f'v_cmp_ne_u32 vcc, s{S_N}, v{vt}',f'v_cmp_ne_u32 s[50:51], s{S_N2}, v{vt+1}','s_or_b64 vcc, vcc, s[50:51]',
      f's_cbranch_vccz {d}',*([f's_sleep {sleep}'] if sleep else []),f's_sub_u32 s{S_SPIN}, s{S_SPIN}, 1',f's_cbranch_scc0 {l}',f's_mov_b32 s{S_SPIN}, 0',f'{d}:')
def get_nonce(e):
    e(f'v_readfirstlane_b32 s{S_N}, v{V_X}',f's_mul_i32 s{S_N}, s{S_N}, 1664525',f's_add_u32 s{S_N}, s{S_N}, 1013904223',
      f's_mul_i32 s{S_N2}, s{S_N}, 0x2545F491',f's_xor_b32 s{S_N2}, s{S_N2}, 0x5bd1e995')
def prologue(e):
    e('s_cmp_ge_u32 s2, 256','s_cbranch_scc1 KEND',
      's_load_dwordx16 s[4:19], s[0:1], 0','s_load_dwordx8 s[20:27], s[0:1], 64','s_load_dwordx4 s[28:31], s[0:1], 96',
      'v_lshrrev_b32 v6, 6, v0','s_nop 0',f'v_readfirstlane_b32 s{S_WAVE}, v6','v_and_b32 v0, 63, v0','v_and_b32 v1, 31, v0','v_lshrrev_b32 v2, 5, v0',
      f'v_mov_b32 v{V_CNT}, {CNT}',f'v_mov_b32 v{V_ONE}, 1',
      f's_and_b32 s{S_XCD}, s2, 7',f's_lshr_b32 s{S_SLOT}, s2, 3',f's_mov_b32 s{S_SPIN}, 0x20000',
      'v_lshlrev_b32 v6, 2, v0',f'v_add_u32 v6, {CNT}, v6','v_mov_b32 v7, 0','v_cmp_gt_u32 vcc, 16, v0','s_and_saveexec_b64 s[50:51], vcc',
      'ds_write_b32 v6, v7','s_mov_b64 exec, -1','v_mov_b32 v6, 0','s_waitcnt lgkmcnt(0)',
      f'global_load_dword v{V_X}, v6, {sp(S_WS)} sc1',
      f's_cmp_ge_u32 s{S_WAVE}, 4','s_cbranch_scc1 SPATH')
def footer():
    return '''.section .rodata,"a"
.p2align 6
.amdhsa_kernel %s
  .amdhsa_next_free_vgpr 256
  .amdhsa_next_free_sgpr 102
  .amdhsa_accum_offset 256
  .amdhsa_group_segment_fixed_size 0
  .amdhsa_kernarg_size 112
  .amdhsa_user_sgpr_count 2
  .amdhsa_user_sgpr_kernarg_segment_ptr 1
  .amdhsa_system_sgpr_workgroup_id_x 1
.end_amdhsa_kernel
'''%KN
def header():
    return '; @launch grid=(256,1,1) block=(512,1,1) lds=%d\n.amdgcn_target "amdgcn-amd-amdhsa--gfx950"\n.text\n.globl %s\n.p2align 8\n.type %s,@function\n%s:\n'%(LDS_SIZE,KN,KN,KN)

import os
PROF=int(os.environ.get('PROF','0'))
PROF_OFF=32<<20
def stamp(e,i):
    if PROF: e(f's_memrealtime s[{66+2*i}:{67+2*i}]')
def stampc(e,i):
    if PROF: e(f's_memtime s[{66+2*i}:{67+2*i}]')
def dump_stamps(e,n,slotbase):
    if not PROF: return
    l=e.lab('pf')
    e(f's_and_b32 s40, s{S_WAVE}, 3','s_cmp_eq_u32 s40, 0',f's_cbranch_scc0 {l}','s_waitcnt lgkmcnt(0)','s_lshl_b32 s40, s2, 8',f's_add_u32 s40, s40, {PROF_OFF+slotbase*4}','v_mov_b32 v6, s40','s_mov_b64 exec, 1')
    for i in range(n): e(f'v_mov_b32 v7, s{66+2*i}',f'global_store_dword v6, v7, {sp(S_WS)} offset:{4*i}','s_nop 0')
    e('s_waitcnt vmcnt(0)','s_mov_b64 exec, -1',f'{l}:')
```

```python
from gen_common import *
import os
KC=MISC; KCP=1664; GL=MISC+3328; UT=65536; UTP=7680
R1=15360; R2=80896; XC3=MISC+3840
S_W4,S_CH,S_NH,S_D0,S_D,S_TAU,S_C4=52,53,58,59,60,61,62
HH='s[54:55]'
def cmul(e,d,a,b):
    e(f'v_pk_mul_f32 {vr(d,2)}, {vr(a,2)}, {vr(b,2)} op_sel:[0,0] op_sel_hi:[0,1]',
      f'v_pk_fma_f32 {vr(d,2)}, {vr(a,2)}, {vr(b,2)}, {vr(d,2)} op_sel:[1,1,0] op_sel_hi:[1,0,1] neg_lo:[1,0,0]')
def unpack(e,dlo,dhi,src):
    e(f'v_and_b32 v{dhi}, 0xffff0000, v{src}',f'v_lshlrev_b32 v{dlo}, 16, v{src}')
def kgen(e):
    DT,DT2=12,13; W1,W8,W256,W2,W4,C2,ZR,ZI=14,16,18,20,22,24,26,27
    Q=32; PK=96; QF=128; PF=160; D=192; VW,VT=6,7
    e(f's_mul_i32 s40, s{S_W4}, 9216',f's_add_u32 s40, s40, {SCR_BASE}',f'v_mul_u32_u24 v{VW}, 144, v0',f'v_add_u32 v{VW}, s40, v{VW}',
      'v_lshrrev_b32 v28, 2, v0','v_and_b32 v28, 3, v28','v_lshl_add_u32 v28, v2, 2, v28','v_mul_u32_u24 v28, 144, v28',
      'v_bfe_u32 v29, v0, 4, 1','v_lshlrev_b32 v29, 5, v29','v_and_b32 v30, 3, v0','v_lshlrev_b32 v30, 3, v30','v_add3_u32 v28, v28, v29, v30',f'v_add_u32 v{VT}, s40, v28')
    e('s_waitcnt vmcnt(8)',f'v_lshlrev_b32 v{DT}, 16, v232',f'v_mul_f32 v{DT}, 0x3fb8aa3b, v{DT}',f'v_exp_f32 v{DT}, v{DT}','s_nop 0',
      f'v_cvt_pk_bf16_f32 v{DT}, v{DT}, v{DT}',f'v_lshlrev_b32 v{DT}, 16, v{DT}',f'v_add_f32 v{DT2}, v{DT}, v{DT}','v_lshlrev_b32 v233, 16, v233')
    for p in range(2):
        for i,dst in enumerate((28,29,C2,C2+1)):
            e(f'v_and_b32 v{dst}, 0xffff0000, v{8+i}' if p else f'v_lshlrev_b32 v{dst}, 16, v{8+i}')
        e('v_mul_f32 v28, 0x3fb8aa3b, v28','v_exp_f32 v28, v28',f'v_mul_f32 v{ZI}, v29, v{DT}','v_cvt_pk_bf16_f32 v28, v28, v28','v_lshlrev_b32 v28, 16, v28',
          f'v_mul_f32 v{ZR}, v28, v{DT}',f'v_mul_f32 v{ZR}, 0xbfb8aa3b, v{ZR}',f'v_mul_f32 v{ZI}, 0x3e22f983, v{ZI}',
          f'v_mul_f32 v{C2}, v{C2}, v{DT2}',f'v_mul_f32 v{C2+1}, v{C2+1}, v{DT2}')
        for w,f in ((W1,'1.0'),(W8,'0x41000000'),(W256,'0x43800000')):
            e(f'v_mul_f32 v28, {f}, v{ZR}',f'v_mul_f32 v29, {f}, v{ZI}','v_exp_f32 v28, v28','v_fract_f32 v29, v29','s_nop 0',f'v_cos_f32 v{w}, v29',f'v_sin_f32 v{w+1}, v29','s_nop 0',
              f'v_mul_f32 v{w}, v{w}, v28',f'v_mul_f32 v{w+1}, v{w+1}, v28')
        e(f'v_mov_b32 v{Q}, 1.0',f'v_mov_b32 v{Q+1}, 0',f'v_mov_b32 v{Q+2}, v{W8}',f'v_mov_b32 v{Q+3}, v{W8+1}')
        cmul(e,Q+4,W8,W8); cmul(e,W2,W1,W1); cmul(e,Q+6,Q+4,W8); cmul(e,Q+8,Q+4,Q+4); cmul(e,W4,W2,W2)
        for j in range(5,32): cmul(e,Q+2*j,Q+2*(j-4),Q+8)
        for k in range(16): e(f'v_cvt_pk_bf16_f32 v{PK+k}, v{Q+4*k}, v{Q+4*k+2}',f'v_cvt_pk_bf16_f32 v{PK+16+k}, v{Q+4*k+1}, v{Q+4*k+3}')
        for k in range(8): e(f'ds_write_b128 v{VW}, {vr(PK+4*k,4)} offset:{16*k}')
        for s in range(8): e(f'ds_read_b64_tr_b16 {vr(QF+4*s,2)}, v{VT} offset:{1152*s}',f'ds_read_b64_tr_b16 {vr(QF+4*s+2,2)}, v{VT} offset:{1152*s+64}')
        R=lambda r: Q+2*r
        e(f'v_mov_b32 v{R(0)}, v{C2}',f'v_mov_b32 v{R(0)+1}, v{C2+1}')
        cmul(e,R(1),C2,W1); cmul(e,R(8),C2,W256)
        for d,a,b in ((2,0,W2),(3,1,W2),(12,8,W256),(4,2,W2),(5,3,W2),(14,12,W256),(9,8,W2),(6,4,W2),(7,5,W2),(16,14,W256),(10,9,W2),(13,12,W4),(17,16,W256),
                      (11,10,W2),(15,14,W4),(18,17,W256),(19,18,W256),(20,19,W256)): cmul(e,R(d),R(a),b)
        for k in range(12): e(f'v_cvt_pk_bf16_f32 v{PK+k}, v{Q+4*k}, v{Q+4*k+2}',f'v_cvt_pk_bf16_f32 v{PK+16+k}, -v{Q+4*k+1}, -v{Q+4*k+3}')
        e('s_waitcnt lgkmcnt(0)')
        for k in range(3): e(f'ds_write_b128 v{VW}, {vr(PK+4*k,4)} offset:{16*k}',f'ds_write_b128 v{VW}, {vr(PK+16+4*k,4)} offset:{64+16*k}')
        for s in range(8): e(f'ds_read_b64_tr_b16 {vr(PF+4*s,2)}, v{VT} offset:{1152*s}',f'ds_read_b64_tr_b16 {vr(PF+4*s+2,2)}, v{VT} offset:{1152*s+64}')
        e('s_waitcnt lgkmcnt(0)')
        for s in range(8): e(mfma(D,PF+4*s,QF+4*s,None if (p==0 and s==0) else D))
    e('s_nop 7','s_nop 7')
    l1,l2=e.lab('k1'),e.lab('k2')
    e('v_lshlrev_b32 v28, 4, v0',f's_cmp_eq_u32 s{S_NH}, 0',f's_cbranch_scc1 {l1}','v_add_u32 v28, s40, v28')
    for q in range(3): e(f'ds_write_b128 v28, {vr(D+4*q,4)} offset:{1024*q}')
    e('s_waitcnt lgkmcnt(0)')
    la,lb=e.lab('a'),e.lab('b')
    e(f's_cmp_eq_u32 s{S_CH}, 0',f's_cbranch_scc0 {la}'); arrive(e,C_S0); e(f's_branch {l2}',f'{la}:'); arrive(e,C_S1); e(f's_branch {l2}',f'{l1}:')
    e('s_add_u32 s41, s40, 9216','v_add_u32 v28, s41, v28',f's_cmp_eq_u32 s{S_CH}, 0',f's_cbranch_scc0 {lb}')
    wait_cnt(e,C_S0,1,29); l3=e.lab('k3'); e(f's_branch {l3}',f'{lb}:'); wait_cnt(e,C_S1,1,29); e(f'{l3}:')
    for q in range(3): e(f'ds_read_b128 {vr(Q+4*q,4)}, v28 offset:{1024*q}')
    e(f's_mul_i32 s41, s{S_CH}, {KCP}',f's_add_u32 s41, s41, {KC}',
      'v_lshlrev_b32 v14, 4, v1','v_lshl_add_u32 v14, v2, 3, v14','v_add_u32 v14, s41, v14',
      'v_lshlrev_b32 v15, 3, v1','v_add_u32 v15, 512, v15','v_lshlrev_b32 v16, 2, v1','v_add_u32 v17, 896, v16','v_add_u32 v16, 768, v16','v_add_u32 v18, 4, v15',
      f'v_cndmask_b32 v15, v15, v16, {HH}',f'v_cndmask_b32 v16, v18, v17, {HH}','v_add_u32 v15, s41, v15','v_add_u32 v16, s41, v16',
      'v_lshlrev_b32 v17, 1, v1','v_add_u32 v17, 1024, v17','v_mov_b32 v18, 1344','v_mov_b32 v19, 1280','v_cmp_eq_u32 vcc, 0, v1','v_cndmask_b32 v18, v18, v19, vcc',
      f'v_cndmask_b32 v17, v17, v18, {HH}','v_add_u32 v17, s41, v17','v_mov_b32 v18, s41','v_mov_b32 v19, 0','ds_write_b32 v18, v19 offset:1288','s_waitcnt lgkmcnt(1)')
    for r in range(12): e(f'v_add_f32 v{D+r}, v{D+r}, v{Q+r}')
    for k in range(6): e(f'v_cvt_pk_bf16_f32 v{Q+k}, v{D+2*k}, v{D+2*k+1}')
    for r in range(12):
        b,off=(14,2*r) if r<4 else (15,2*(r-4)) if r<6 else (16,2*(r-6)) if r<8 else (17,64*(r-8))
        e(f'ds_write_b16{"_d16_hi" if r&1 else ""} v{b}, v{Q+r//2} offset:{off}')
    e('s_waitcnt lgkmcnt(0)'); arrive(e,C_S2); e(f'{l2}:')
def gather_addrs(e,GA):
    e(f'v_lshl_add_u32 v6, s{S_W4}, 6, v0','v_sub_u32 v6, 255, v6')
    for gi in range(2):
        e(f'v_subrev_u32 v7, {gi}, v6','v_max_i32 v8, 0, v7','v_or_b32 v8, 16, v8','v_ffbh_u32 v8, v8','v_sub_u32 v8, 27, v8',
          'v_lshlrev_b32 v9, v8, v5','v_add_u32 v9, -1, v9','v_add_u32 v10, 1, v8','v_lshlrev_b32 v11, 8, v8',f'v_add_u32 v11, {KC}, v11','v_lshlrev_b32 v12, 3, v7')
        for i in range(8):
            a=GA+8*gi+i
            e(f'v_add_u32 v13, {7-i}, v12','v_bfe_u32 v14, v13, v8, 1','v_lshl_add_u32 v13, v13, 1, v9','v_add_u32 v13, v13, v14','v_lshrrev_b32 v13, v10, v13',f'v_lshl_add_u32 v{a}, v13, 1, v11')
            if gi: e('v_cmp_gt_i32 vcc, 0, v7',f'v_mov_b32 v14, {KC+1288}',f'v_cndmask_b32 v{a}, v{a}, v14, vcc')
def tbuild(e,GA):
    W,X,W_,X_=32,40,48,56
    e(f'v_lshl_add_u32 v6, s{S_W4}, 6, v0')
    e('v_lshlrev_b32 v7, 4, v6',f'v_add_u32 v7, {UT}, v7','v_mov_b32 v28, 0','v_mov_b32 v29, 0','v_mov_b32 v30, 0','v_mov_b32 v31, 0',
      'v_cmp_gt_u32 vcc, 160, v6','s_and_saveexec_b64 s[50:51], vcc',f'ds_write_b128 v7, v[28:31]',f'ds_write_b128 v7, v[28:31] offset:{UTP}','s_mov_b64 exec, -1')
    e('v_lshrrev_b32 v7, 2, v6','v_mul_u32_u24 v7, 80, v7','v_and_b32 v8, 3, v6','v_lshlrev_b32 v8, 4, v8',f'v_add3_u32 v7, v7, v8, s63')
    e('s_mov_b32 s40, 0x05040100','s_mov_b32 s41, 0x07060302')
    for k in range(4): e(f'v_perm_b32 v{W+k}, v{225+2*k}, v{224+2*k}, s40',f'v_perm_b32 v{W+4+k}, v{225+2*k}, v{224+2*k}, s41')
    e(f'ds_write_b128 v7, {vr(W,4)}',f'ds_write_b128 v7, {vr(W+4,4)} offset:{UTP}')
    l=e.lab('z'); e(f's_cmp_eq_u32 s{S_W4}, 3',f's_cbranch_scc0 {l}','v_bfe_u32 v8, v0, 2, 3')
    toff(e,8,9,10); e('v_and_b32 v8, 3, v0','v_add_u32 v9, v9, v8','v_lshlrev_b32 v9, 4, v9',f'v_mul_u32_u24 v8, {T_CH}, v2',f'v_add3_u32 v9, v9, v8, s50' if 0 else f'v_add_u32 v9, v9, v8',
      f'v_add_u32 v9, {T_BASE+256*16}, v9','ds_write_b128 v9, v[28:31]',f'{l}:')
    e('v_lshlrev_b32 v7, 4, v6',f'v_add_u32 v7, {T_BASE}, v7',f'v_add_u32 v8, {T_CH}, v7')
    for ch in range(2):
        for i in range(16): e(f'ds_read_u16 v{64+i}, v{GA+i} offset:{ch*KCP}')
        e('s_waitcnt lgkmcnt(0)')
        for k in range(8): e(f'v_lshl_or_b32 v{W+k}, v{65+2*k}, 16, v{64+2*k}')
        for k in range(6): e(f'v_alignbit_b32 v{X+k}, v{W+k+1}, v{W+k}, 16',f'v_mov_b32 v{W_+k}, v{W+k+1}',f'v_alignbit_b32 v{X_+k}, v{W+k+2}, v{W+k+1}, 16')
        src={0:W,4:W+2,2:W_,6:W_+2,1:X,5:X+2,3:X_,7:X_+2}
        for t in range(8):
            s=(t+1)&7; g=1 if t==7 else 0
            e(f'ds_write_b128 v{7+ch}, {vr(src[t],4)} offset:{(T_OFF[s]+g)*16}')
def toff(e,vs,vd,vt):
    e(f'v_add_u32 v{vt}, -1, v{vs}',f'v_and_b32 v{vt}, 3, v{vt}',f'v_mul_u32_u24 v{vt}, 3, v{vt}',f'v_cmp_eq_u32 vcc, 0, v{vs}',f'v_cndmask_b32 v{vt}, v{vt}, v{vs}, vcc',
      f'v_mul_u32_u24 v{vd}, 273, v{vs}',f'v_add_u32 v{vd}, v{vd}, v{vt}')
def conv(e):
    Y=32; RG=64
    e('v_sub_u32 v8, 0, v1','v_and_b32 v8, 7, v8'); toff(e,8,9,10)
    e('v_add_u32 v8, 7, v1','v_lshrrev_b32 v8, 3, v8','v_sub_u32 v9, v9, v8','v_add_u32 v9, v9, v2',f's_lshl_b32 s40, s{S_NH}, 1','s_add_u32 s40, s40, 256','v_add_u32 v9, s40, v9',
      'v_lshlrev_b32 v9, 4, v9',f's_mul_i32 s40, s{S_CH}, {T_CH}',f's_add_u32 s40, s40, {T_BASE-4032}','v_add_u32 v9, s40, v9',
      'v_add_u32 v8, 1, v1','v_mul_u32_u24 v8, 80, v8','v_lshl_add_u32 v8, v2, 4, v8',f's_mul_i32 s40, s{S_CH}, {UTP}',f's_lshl_b32 s41, s{S_NH}, 5','s_add_u32 s40, s40, s41',
      f's_add_u32 s40, s40, {UT}','v_add_u32 v8, s40, v8')
    def rd(d):
        b=RG+16*(d%3)
        e(f'ds_read_b128 {vr(b,4)}, v9 offset:{4032-64*d}',f'ds_read_b128 {vr(b+4,4)}, v8 offset:{(31-d)*80}',
          f'ds_read_b128 {vr(b+8,4)}, v8 offset:{(31-d)*80+2560}',f'ds_read_b128 {vr(b+12,4)}, v9 offset:{4032-64*(d+32)}')
    rd(0); rd(1)
    for d in range(32):
        if d+2<32: rd(d+2); e('s_waitcnt lgkmcnt(8)')
        elif d==30: e('s_waitcnt lgkmcnt(4)')
        else: e('s_waitcnt lgkmcnt(0)')
        b=RG+16*(d%3)
        e(mfma(Y+16,b,b+8,None if d==0 else Y+16),mfma(Y,b,b+4,None if d==0 else Y),mfma(Y+16,b+12,b+4,Y+16))
    e('s_nop 7','s_nop 7')
    l=e.lab('sw'); e(f's_cmp_eq_u32 s{S_NH}, 0',f's_cbranch_scc1 {l}')
    for r in range(16): e(f'v_swap_b32 v{Y+r}, v{Y+16+r}')
    e(f'{l}:',f's_lshl_b32 s40, s{S_W4}, 12',f's_cmp_eq_u32 s{S_W4}, 3',f's_cselect_b32 s40, {XC3}, s40',
      f's_xor_b32 s41, s{S_W4}, 1','s_lshl_b32 s42, s41, 12','s_cmp_eq_u32 s41, 3',f's_cselect_b32 s41, {XC3}, s42',
      'v_lshlrev_b32 v10, 4, v0','v_add_u32 v11, s40, v10','v_add_u32 v10, s41, v10')
    for q in range(4): e(f'ds_write_b128 v11, {vr(Y+16+4*q,4)} offset:{1024*q}')
    e('s_waitcnt lgkmcnt(0)'); arrive(e,C_S4); wait_cnt(e,C_S4,4,12,2)
def conv_epi(e):
    Y=32; U=64; T=72
    for q in range(4): e(f'ds_read_b128 {vr(Y+16+4*q,4)}, v10 offset:{1024*q}')
    e(f's_mul_i32 s40, s{S_CH}, {UTP}',f's_mul_i32 s41, s{S_NH}, 2560','s_add_u32 s40, s40, s41',f's_add_u32 s40, s40, {UT+2560}',
      'v_mul_u32_u24 v8, 80, v1','v_lshl_add_u32 v8, v2, 3, v8','v_add_u32 v8, s40, v8')
    for q in range(4): e(f'ds_read_b64 {vr(U+2*q,2)}, v8 offset:{16*q}')
    e(f's_lshl_b32 s40, s{S_D}, 12',f's_lshl_b32 s41, s{S_NH}, 11','s_add_u32 s40, s40, s41',f's_add_u32 s40, s40, {AT_OFF}',
      'v_lshlrev_b32 v9, 6, v1','v_lshl_add_u32 v9, v2, 3, v9','v_add_u32 v9, s40, v9','s_waitcnt lgkmcnt(0)')
    for r in range(16): e(f'v_add_f32 v{Y+r}, v{Y+r}, v{Y+16+r}')
    for k in range(8):
        e(f'v_cvt_pk_bf16_f32 v{T}, v{Y+2*k}, v{Y+2*k+1}'); unpack(e,T+2,T+3,U+k)
        e(f'v_mul_f32 v{T+2}, v233, v{T+2}',f'v_mul_f32 v{T+3}, v233, v{T+3}',f'v_cvt_pk_bf16_f32 v{T+1}, v{T+2}, v{T+3}')
        unpack(e,T+2,T+3,T); unpack(e,T+4,T+5,T+1)
        e(f'v_add_f32 v{T+2}, v{T+2}, v{T+4}',f'v_add_f32 v{T+3}, v{T+3}, v{T+5}',f'v_cvt_pk_bf16_f32 v{U+k}, v{T+2}, v{T+3}')
    for q in range(4): e(f'global_store_dwordx2 v9, {vr(U+2*q,2)}, {sp(S_WS)} offset:{16*q} sc1')
def wo_dma(e):
    e(f's_mov_b32 s44, s{S_WO}',f's_mov_b32 s45, s{S_WO+1}','s_mov_b32 s46, 401408','s_mov_b32 s47, 0x20000',f's_mul_i32 s41, s{S_C4}, 224')
    for i in range(7):
        e(f'v_add_u32 v6, {64*i}, v0','v_mul_u32_u24 v7, 0x4925, v6','v_lshrrev_b32 v7, 18, v7','v_mul_u32_u24 v12, 14, v7','v_sub_u32 v6, v6, v12','v_lshlrev_b32 v6, 4, v6',
          'v_mul_u32_u24 v7, 896, v7',f'v_add3_u32 v{240+i}, v6, v7, s41')
    for k in range(4):
        l=e.lab('g')
        e(f's_add_u32 s42, s{S_W4}, {4*k}')
        if k==3: e('s_cmp_lt_u32 s42, 14',f's_cbranch_scc0 {l}')
        e('s_mul_i32 s43, s42, 28672','s_mul_i32 s48, s42, 7168',f's_add_u32 s49, s48, {R2-7*7168}',f's_add_u32 s48, s48, {R1}','s_cmp_lt_u32 s42, 7','s_cselect_b32 s48, s48, s49')
        for i in range(7): e(f's_add_u32 m0, s48, {1024*i}','s_nop 0',f'buffer_load_dwordx4 v{240+i}, s[44:47], s43 offen lds')
        e(f'{l}:')
def spath(e):
    GA=208
    stamp(e,0)
    e(f's_sub_u32 s{S_W4}, s{S_WAVE}, 4',f's_lshr_b32 s{S_CH}, s{S_W4}, 1',f's_and_b32 s{S_NH}, s{S_W4}, 1',
      f's_mul_i32 s{S_D0}, s{S_XCD}, 56',f's_lshl_b32 s40, s{S_SLOT}, 1',f's_add_u32 s{S_D0}, s{S_D0}, s40',f's_add_u32 s{S_D}, s{S_D0}, s{S_CH}',
      f's_lshr_b32 s{S_C4}, s{S_XCD}, 1',f's_and_b32 s40, s{S_XCD}, 1','s_lshl_b32 s40, s40, 5',f's_add_u32 s{S_TAU}, s40, s{S_SLOT}',
      f'v_cmp_eq_u32 {HH}, 1, v2',f's_mov_b32 s63, {UT+2560}')
    e(f's_cmp_ge_u32 s{S_SLOT}, 28','s_cbranch_scc1 SNOSSM')
    e(f's_lshl_b32 s40, s{S_D}, 9',f's_lshl_b32 s41, s{S_NH}, 8','s_add_u32 s40, s40, s41','v_lshl_add_u32 v6, v0, 2, s40',f's_lshl_b32 s41, s{S_D}, 1','v_mov_b32 v7, s41',
      f'global_load_ushort v232, v7, {sp(S_DT)}',f'global_load_ushort v233, v7, {sp(S_DS)}')
    for i,p in enumerate((S_LA,S_AI,S_CR,S_CI)): e(f'global_load_dword v{8+i}, v6, {sp(p)}')
    e(f'v_lshl_add_u32 v28, s{S_W4}, 6, v0','v_mul_u32_u24 v28, 7168, v28',f's_lshl_b32 s41, s{S_D0}, 1','v_add_u32 v28, s41, v28','v_add_u32 v29, 3584, v28')
    for i in range(8): e(f'global_load_dword v{224+i}, v{28+i//4}, {sp(S_X)} offset:{896*(i&3)}')
    e('s_waitcnt vmcnt(8)')
    for i in range(4): e(f'v_mov_b32 v{234+i}, v{8+i}')
    gather_addrs(e,GA)
    for i in range(4): e(f'v_mov_b32 v{8+i}, v{234+i}')
    stamp(e,1)
    kgen(e)
    stamp(e,2)
    get_nonce(e)
    e('s_waitcnt vmcnt(0)')
    wait_cnt(e,C_S2,2,6,4); wait_cnt(e,C_RING,4,6,8)
    stamp(e,3)
    if os.environ.get('DBG'):
        e(f'v_lshl_add_u32 v6, s{S_W4}, 6, v0','v_lshlrev_b32 v6, 4, v6',f'v_add_u32 v7, {KC}, v6','ds_read_b128 v[32:35], v7','s_lshl_b32 s40, s2, 12',f's_add_u32 s40, s40, {20<<20}',
          'v_add_u32 v6, s40, v6','s_waitcnt lgkmcnt(0)',f'global_store_dwordx4 v6, v[32:35], {sp(S_WS)}','s_waitcnt vmcnt(0)')
    tbuild(e,GA)
    e('s_waitcnt lgkmcnt(0)'); arrive(e,C_S3); wait_cnt(e,C_S3,4,6,2)
    stamp(e,4)
    conv(e)
    stamp(e,5)
    wo_dma(e)
    conv_epi(e)
    sk=e.lab('sk')
    e('s_waitcnt vmcnt(0)'); arrive_rtn(e,C_AD,6,3,sk)
    e(f's_mul_i32 s40, s{S_XCD}, 28',f's_add_u32 s40, s40, s{S_SLOT}','s_lshl_b32 s40, s40, 3',f's_add_u32 s40, s40, {AFLG}','v_mov_b32 v6, s40',
      f'v_mov_b32 v8, s{S_N}',f'v_mov_b32 v9, s{S_N2}','s_mov_b64 exec, 1',f'global_store_dwordx2 v6, v[8:9], {sp(S_WS)} sc1','s_mov_b64 exec, -1',f'{sk}:')
    e('s_branch SFIN','SNOSSM:','s_waitcnt vmcnt(0)')
    get_nonce(e); wait_cnt(e,C_RING,4,6,8); wo_dma(e)
    e('SFIN:')
    stamp(e,6)
    final(e)
def final(e):
    D=16; AV=32; RG=48; WF=64; OF=128
    e(f's_lshl_b32 s40, s{S_TAU}, 5','v_add_u32 v6, s40, v1','v_mul_u32_u24 v6, 896, v6',f's_mul_i32 s41, s{S_W4}, 224','v_lshl_add_u32 v7, v2, 4, s41','v_add_u32 v6, v6, v7')
    for s in range(7): e(f'global_load_dwordx4 {vr(OF+8*s,4)}, v6, {sp(S_X)} offset:{32*s}',f'global_load_dwordx4 {vr(OF+8*s+4,4)}, v7, {sp(S_GW)} offset:{32*s}')
    e('s_waitcnt vmcnt(0)'); arrive(e,C_FB)
    for s in range(7): e(mfma(D,OF+8*s+4,OF+8*s,None if s==0 else D))
    e(f's_lshl_b32 s40, s{S_W4}, 7',f's_add_u32 s40, s40, {GL}','v_lshl_add_u32 v6, v1, 2, s40',f'v_lshlrev_b32 v7, 2, v1',f'v_add_u32 v7, {GL}, v7','s_nop 7','s_nop 7',
      f'ds_write_b32 v6, v{D}','s_waitcnt lgkmcnt(0)'); arrive(e,C_S6)
    e('v_lshrrev_b32 v10, 2, v0','v_and_b32 v10, 3, v10','v_lshl_add_u32 v10, v2, 2, v10','v_mul_u32_u24 v10, 224, v10','v_bfe_u32 v11, v0, 4, 1','v_lshlrev_b32 v11, 5, v11',
      'v_and_b32 v12, 3, v0','v_lshlrev_b32 v12, 3, v12','v_add3_u32 v10, v10, v11, v12',f's_mul_i32 s40, s{S_W4}, 56',f's_add_u32 s40, s40, {R1}','v_add_u32 v10, s40, v10',f'v_add_u32 v11, {R2-R1}, v10')
    wait_cnt(e,C_FB,4,12,2)
    def fr(f,dst,base):
        off=(28*(f//2)+16*(f&1))*224
        e(f'ds_read_b64_tr_b16 {vr(dst,2)}, v{base} offset:{off}',f'ds_read_b64_tr_b16 {vr(dst+2,2)}, v{base} offset:{off+1792}')
    for f in range(16): fr(f,WF+4*f,10)
    wait_cnt(e,C_S6,4,12,2)
    e('s_waitcnt lgkmcnt(0)'); arrive(e,C_S5)
    e(f'v_cndmask_b32 v{WF+62}, v{WF+62}, 0, {HH}' if 0 else f'v_mov_b32 v12, 0',f'v_cndmask_b32 v{WF+62}, v{WF+62}, v12, {HH}',f'v_cndmask_b32 v{WF+63}, v{WF+63}, v12, {HH}')
    for k in range(4): e(f'ds_read_b32 v{D+k}, v7 offset:{128*k}')
    e('s_waitcnt lgkmcnt(0)',f'v_add_f32 v{D}, v{D}, v{D+1}',f'v_add_f32 v{D+2}, v{D+2}, v{D+3}',f'v_add_f32 v{D}, v{D}, v{D+2}',
      f'v_cvt_pk_bf16_f32 v{D}, v{D}, v{D}',f'v_lshlrev_b32 v{D}, 16, v{D}',f'v_mul_f32 v{D}, 0xbfb8aa3b, v{D}',f'v_exp_f32 v{D}, v{D}','s_nop 0',f'v_add_f32 v{D}, 1.0, v{D}',
      f'v_rcp_f32 v{D}, v{D}','s_nop 0',f'v_cvt_pk_bf16_f32 v{D}, v{D}, v{D}',f'v_lshlrev_b32 v8, 16, v{D}','v_sub_f32 v9, 1.0, v8','v_cvt_pk_bf16_f32 v9, v9, v9','v_lshlrev_b32 v9, 16, v9')
    stamp(e,7)
    e(f's_mul_i32 s40, s{S_C4}, 448',f's_add_u32 s40, s40, {AFLG}','v_min_u32 v6, 55, v0','v_lshl_add_u32 v6, v6, 3, s40')
    poll_flags(e,6,12)
    e(f's_mul_i32 s40, s{S_C4}, 112',f's_mul_i32 s41, s{S_W4}, 28','s_add_u32 s40, s40, s41','s_lshl_b32 s40, s40, 12',f's_lshl_b32 s41, s{S_TAU}, 6','s_add_u32 s40, s40, s41',f's_add_u32 s40, s40, {AT_OFF}',
      'v_lshlrev_b32 v6, 14, v2','v_lshl_add_u32 v6, v1, 1, v6','v_add_u32 v6, s40, v6')
    for r in range(16):
        ch=8*(r//4)+r%4
        if r>=12: e(f'v_add_u32 v7, {ch*4096}, v6',f'v_subrev_u32 v12, 16384, v7',f'v_cndmask_b32 v7, v7, v12, {HH}')
        else: e(f'v_add_u32 v7, {ch*4096}, v6')
        e(f'global_load_ushort v{AV+r}, v7, {sp(S_WS)} sc1')
    l=e.lab('n0'); e('s_or_b32 s40, s2, '+f's{S_W4}','s_cmp_eq_u32 s40, 0',f's_cbranch_scc0 {l}',
      'v_min_u32 v7, 47, v0',f'v_lshlrev_b32 v7, 3, v7',f'v_add_u32 v7, {QFLG}, v7','s_mov_b32 s41, 16','NQL:')
    poll_flags(e,7,12)
    e('v_add_u32 v7, 512, v7','s_sub_u32 s41, s41, 1','s_cmp_lg_u32 s41, 0','s_cbranch_scc1 NQL',f'{l}:')
    e('s_waitcnt vmcnt(0)')
    for r in range(0,16,2):
        e(f'v_lshlrev_b32 v{AV+r}, 16, v{AV+r}',f'v_lshlrev_b32 v{AV+r+1}, 16, v{AV+r+1}',f'v_mul_f32 v{AV+r}, v8, v{AV+r}',f'v_mul_f32 v{AV+r+1}, v8, v{AV+r+1}',
          f'v_cvt_pk_bf16_f32 v12, v{AV+r}, v{AV+r+1}'); unpack(e,AV+r,AV+r+1,12)
    e(f's_lshr_b32 s40, s{S_TAU}, 2','s_lshl_b32 s40, s40, 7',f's_add_u32 s40, s40, {OFLG}','v_and_b32 v6, 15, v0','v_lshl_add_u32 v6, v6, 3, s40',
      f's_lshl_b32 s40, s{S_TAU}, 15',f's_add_u32 s40, s40, {O_OFF}','v_lshl_add_u32 v7, v0, 4, s40',
      f's_lshl_b32 s40, s{S_TAU}, 5','v_add_u32 v14, s40, v1','v_mul_u32_u24 v14, 896, v14',f's_mul_i32 s40, s{S_C4}, 224',f's_mul_i32 s41, s{S_W4}, 56','s_add_u32 s40, s40, s41',
      'v_lshl_add_u32 v15, v2, 3, s40','v_add_u32 v14, v14, v15')
    def fr2(f): fr(f-16,RG+4*(f&3),11)
    for f in range(16,20): fr2(f)
    stamp(e,8)
    e('s_barrier')
    stamp(e,9)
    poll_flags(e,6,12)
    stamp(e,10)
    for f in range(32):
        if f and f%4==0: e('v_add_u32 v7, 4096, v7')
        e(f'global_load_dwordx4 {vr(OF+4*f,4)}, v7, {sp(S_WS)} offset:{1024*(f&3)} sc1')
    for f in range(32):
        e(f's_waitcnt vmcnt({31-f})')
        if f<16: e(mfma(D,WF+4*f,OF+4*f,None if f==0 else D))
        else:
            rem=min(31-f,3); e(f's_waitcnt lgkmcnt({2*rem})')
            if f==31: e('v_mov_b32 v12, 0',f'v_cndmask_b32 v{RG+14}, v{RG+14}, v12, {HH}',f'v_cndmask_b32 v{RG+15}, v{RG+15}, v12, {HH}','s_nop 1')
            e(mfma(D,RG+4*(f&3),OF+4*f,D))
            if f+4<32: e('s_nop 7'); fr2(f+4)
    stamp(e,11)
    e('s_nop 7','s_nop 7')
    for k in range(8):
        e(f'v_cvt_pk_bf16_f32 v12, v{D+2*k}, v{D+2*k+1}'); unpack(e,10,11,12)
        e('v_mul_f32 v10, v9, v10','v_mul_f32 v11, v9, v11','v_cvt_pk_bf16_f32 v12, v10, v11'); unpack(e,10,11,12)
        e(f'v_add_f32 v10, v10, v{AV+2*k}',f'v_add_f32 v11, v11, v{AV+2*k+1}',f'v_cvt_pk_bf16_f32 v{WF+k}, v10, v11')
    for q in range(4):
        if q==3: e('s_mov_b32 exec_hi, 0')
        e(f'global_store_dwordx2 v14, {vr(WF+2*q,2)}, {sp(S_OUT)} offset:{16*q}')
    e('s_mov_b64 exec, -1')
    l=e.lab('n1'); e('s_or_b32 s40, s2, '+f's{S_W4}','s_cmp_eq_u32 s40, 0',f's_cbranch_scc0 {l}','v_mov_b32 v6, 0',f'v_mov_b32 v7, s{S_N}','s_mov_b64 exec, 1',
      f'global_store_dword v6, v7, {sp(S_WS)} sc1','s_mov_b64 exec, -1',f'{l}:')
    stamp(e,12); dump_stamps(e,14,16)
```

```python
import sys,importlib
from gen_common import *
import gen_a
import re
def fixhaz(L):
    out=[]; n=0
    def ws(x):
        m=re.match(r's_nop (\d+)',x)
        return int(m.group(1))+1 if m else (0 if x.endswith(':') else 1)
    for x in L:
        if x.startswith('v_') :
            ops=x.split(None,1)[1].split(', ') if ' ' in x else []
            srcs=[o.split()[0] for o in ops[1:]]
            if x.startswith('v_cmp'): srcs=[o.split()[0] for o in ops[1:]]
            need=0; d=0
            for y in reversed(out):
                if d>=2: break
                if y.startswith('v_cmp') or y.startswith('v_readfirstlane'):
                    dst=y.split(None,1)[1].split(', ')[0]
                    regs={dst}
                    m=re.match(r's\[(\d+):(\d+)\]',dst)
                    if m: regs|={f's{i}' for i in range(int(m.group(1)),int(m.group(2))+1)}
                    hit=any(s_ in regs for s_ in srcs)
                    if hit: need=max(need,2-d)
                d+=ws(y)
            if need: out.append(f's_nop {need-1}'); n+=1
        out.append(x)
    print('hazard nops inserted',n)
    return out
def build(stages='all'):
    e=E()
    prologue(e)
    gen_a.qkv(e); gen_a.attn(e)
    e('SPATH:')
    try:
        import gen_s
        gen_s.spath(e)
    except ImportError:
        e('s_barrier')
    e('KEND:','s_endpgm')
    e.L=fixhaz(e.L)
    return header()+'\n'.join(e.L)+'\n'+footer()
if __name__=='__main__':
    open(sys.argv[1],'w').write(build())
```

```python
from gen_common import *
import os
KC=MISC; KCP=1664; GL=MISC+3328; UT=65536; UTP=7680
R1=15360; R2=80896; XC3=MISC+3840
S_W4,S_CH,S_NH,S_D0,S_D,S_TAU,S_C4=52,53,58,59,60,61,62
HH='s[54:55]'
def cmul(e,d,a,b):
    e(f'v_pk_mul_f32 {vr(d,2)}, {vr(a,2)}, {vr(b,2)} op_sel:[0,0] op_sel_hi:[0,1]',
      f'v_pk_fma_f32 {vr(d,2)}, {vr(a,2)}, {vr(b,2)}, {vr(d,2)} op_sel:[1,1,0] op_sel_hi:[1,0,1] neg_lo:[1,0,0]')
DET=int(os.environ.get('DET','0'))
_stamp=stamp
def dstamp(e,i):
    if DET: _stamp(e,i)
def stamp(e,i):
    if DET:
        m={0:0,1:1,2:2,3:9,4:10,5:11,6:12}
        if i in m: _stamp(e,m[i])
    else: _stamp(e,i)
def cmuls(e,L):
    for d,a,b in L: e(f'v_pk_mul_f32 {vr(d,2)}, {vr(a,2)}, {vr(b,2)} op_sel:[0,0] op_sel_hi:[0,1]')
    for d,a,b in L: e(f'v_pk_fma_f32 {vr(d,2)}, {vr(a,2)}, {vr(b,2)}, {vr(d,2)} op_sel:[1,1,0] op_sel_hi:[1,0,1] neg_lo:[1,0,0]')
def unpack(e,dlo,dhi,src):
    e(f'v_and_b32 v{dhi}, 0xffff0000, v{src}',f'v_lshlrev_b32 v{dlo}, 16, v{src}')
def u_loads(e):
    e(f'v_lshl_add_u32 v28, s{S_W4}, 6, v0','v_mul_u32_u24 v28, 7168, v28',f's_lshl_b32 s41, s{S_D0}, 1','v_add_u32 v28, s41, v28','v_add_u32 v29, 3584, v28')
    for i in range(8): e(f'global_load_dword v{224+i}, v{28+i//4}, {sp(S_X)} offset:{896*(i&3)}')
GX=128
def gate_loads(e):
    e(f's_lshl_b32 s42, s{S_TAU}, 5','v_add_u32 v30, s42, v1','v_mul_u32_u24 v30, 896, v30',f's_mul_i32 s42, s{S_W4}, 224','v_lshl_add_u32 v31, v2, 4, s42','v_add_u32 v30, v30, v31')
    for s in range(7): e(f'global_load_dwordx4 {vr(GX+8*s,4)}, v30, {sp(S_X)} offset:{32*s}',f'global_load_dwordx4 {vr(GX+8*s+4,4)}, v31, {sp(S_GW)} offset:{32*s}')
def gate_mfma(e):
    D=16
    e('s_waitcnt vmcnt(0)')
    for s in range(7): e(mfma(D,GX+8*s+4,GX+8*s,None if s==0 else D))
    e(f's_lshl_b32 s40, s{S_W4}, 7',f's_add_u32 s40, s40, {GL}','v_lshl_add_u32 v6, v1, 2, s40','s_nop 7','s_nop 7',f'ds_write_b32 v6, v{D}','s_waitcnt lgkmcnt(0)'); arrive(e,C_S6)
def kgen(e):
    DT,DT2=12,13; W1,W8,W256,W2,W4,C2,ZR,ZI=14,16,18,20,22,24,26,27
    Q=32; PK=96; QF=128; PF=160; D=192; VW,VT=6,7
    e(f's_mul_i32 s40, s{S_W4}, 9216',f's_add_u32 s40, s40, {SCR_BASE}',f'v_mul_u32_u24 v{VW}, 144, v0',f'v_add_u32 v{VW}, s40, v{VW}',
      'v_lshrrev_b32 v28, 2, v0','v_and_b32 v28, 3, v28','v_lshl_add_u32 v28, v2, 2, v28','v_mul_u32_u24 v28, 144, v28',
      'v_bfe_u32 v29, v0, 4, 1','v_lshlrev_b32 v29, 5, v29','v_and_b32 v30, 3, v0','v_lshlrev_b32 v30, 3, v30','v_add3_u32 v28, v28, v29, v30',f'v_add_u32 v{VT}, s40, v28')
    e('s_waitcnt vmcnt(0)',f'v_lshlrev_b32 v{DT}, 16, v232',f'v_mul_f32 v{DT}, 0x3fb8aa3b, v{DT}',f'v_exp_f32 v{DT}, v{DT}','s_nop 0',
      f'v_cvt_pk_bf16_f32 v{DT}, v{DT}, v{DT}',f'v_lshlrev_b32 v{DT}, 16, v{DT}',f'v_add_f32 v{DT2}, v{DT}, v{DT}','v_lshlrev_b32 v233, 16, v233')
    for p in range(2):
        for i,dst in enumerate((28,29,C2,C2+1)):
            e(f'v_and_b32 v{dst}, 0xffff0000, v{8+i}' if p else f'v_lshlrev_b32 v{dst}, 16, v{8+i}')
        e('v_mul_f32 v28, 0x3fb8aa3b, v28','v_exp_f32 v28, v28',f'v_mul_f32 v{ZI}, v29, v{DT}','v_cvt_pk_bf16_f32 v28, v28, v28','v_lshlrev_b32 v28, 16, v28',
          f'v_mul_f32 v{ZR}, v28, v{DT}',f'v_mul_f32 v{ZR}, 0xbfb8aa3b, v{ZR}',f'v_mul_f32 v{ZI}, 0x3e22f983, v{ZI}',
          f'v_mul_f32 v{C2}, v{C2}, v{DT2}',f'v_mul_f32 v{C2+1}, v{C2+1}, v{DT2}')
        AN=((W1,'1.0',32,33),(W8,'0x41000000',34,35),(W256,'0x43800000',36,37))
        for w,f,a_,b_ in AN: e(f'v_mul_f32 v{a_}, {f}, v{ZR}',f'v_mul_f32 v{b_}, {f}, v{ZI}')
        for w,f,a_,b_ in AN: e(f'v_exp_f32 v{a_}, v{a_}',f'v_fract_f32 v{b_}, v{b_}')
        for w,f,a_,b_ in AN: e(f'v_cos_f32 v{w}, v{b_}',f'v_sin_f32 v{w+1}, v{b_}')
        e('s_nop 0')
        for w,f,a_,b_ in AN: e(f'v_mul_f32 v{w}, v{w}, v{a_}',f'v_mul_f32 v{w+1}, v{w+1}, v{a_}')
        e(f'v_mov_b32 v{Q}, 1.0',f'v_mov_b32 v{Q+1}, 0',f'v_mov_b32 v{Q+2}, v{W8}',f'v_mov_b32 v{Q+3}, v{W8+1}')
        cmuls(e,[(Q+4,W8,W8),(W2,W1,W1)]); cmuls(e,[(Q+6,Q+4,W8),(Q+8,Q+4,Q+4),(W4,W2,W2)])
        cmuls(e,[(Q+2*j,Q+2*(j-4),Q+8) for j in (5,6,7)])
        for j0 in range(8,32,4): cmuls(e,[(Q+2*j,Q+2*(j-4),Q+8) for j in range(j0,j0+4)])
        for k in range(16): e(f'v_cvt_pk_bf16_f32 v{PK+k}, v{Q+4*k}, v{Q+4*k+2}',f'v_cvt_pk_bf16_f32 v{PK+16+k}, v{Q+4*k+1}, v{Q+4*k+3}')
        for k in range(8): e(f'ds_write_b128 v{VW}, {vr(PK+4*k,4)} offset:{16*k}')
        for s in range(8): e(f'ds_read_b64_tr_b16 {vr(QF+4*s,2)}, v{VT} offset:{1152*s}',f'ds_read_b64_tr_b16 {vr(QF+4*s+2,2)}, v{VT} offset:{1152*s+64}')
        R=lambda r: Q+2*r
        e(f'v_mov_b32 v{R(0)}, v{C2}',f'v_mov_b32 v{R(0)+1}, v{C2+1}')
        for grp in (((1,0,W1),(8,0,W256),(2,0,W2)),((3,1,W2),(12,8,W256),(4,2,W2),(9,8,W2)),((5,3,W2),(14,12,W256),(6,4,W2),(10,9,W2),(13,12,W4)),
                    ((7,5,W2),(16,14,W256),(11,10,W2),(15,14,W4)),((17,16,W256),),((18,17,W256),),((19,18,W256),),((20,19,W256),)):
            cmuls(e,[(R(d),R(a),b) for d,a,b in grp])
        for k in range(12): e(f'v_cvt_pk_bf16_f32 v{PK+k}, v{Q+4*k}, v{Q+4*k+2}',f'v_cvt_pk_bf16_f32 v{PK+16+k}, -v{Q+4*k+1}, -v{Q+4*k+3}')
        e('s_waitcnt lgkmcnt(0)')
        for k in range(3): e(f'ds_write_b128 v{VW}, {vr(PK+4*k,4)} offset:{16*k}',f'ds_write_b128 v{VW}, {vr(PK+16+4*k,4)} offset:{64+16*k}')
        for s in range(8): e(f'ds_read_b64_tr_b16 {vr(PF+4*s,2)}, v{VT} offset:{1152*s}',f'ds_read_b64_tr_b16 {vr(PF+4*s+2,2)}, v{VT} offset:{1152*s+64}')
        e('s_waitcnt lgkmcnt(0)')
        for s in range(8): e(mfma(D,PF+4*s,QF+4*s,None if (p==0 and s==0) else D))
        dstamp(e,5+2*p)
    u_loads(e); dstamp(e,6)
    gate_loads(e); dstamp(e,8)
    e('s_nop 7','s_nop 7')
    l1,l2=e.lab('k1'),e.lab('k2')
    e('v_lshlrev_b32 v28, 4, v0',f's_cmp_eq_u32 s{S_NH}, 0',f's_cbranch_scc1 {l1}','v_add_u32 v28, s40, v28')
    for q in range(3): e(f'ds_write_b128 v28, {vr(D+4*q,4)} offset:{1024*q}')
    e('s_waitcnt lgkmcnt(0)')
    la,lb=e.lab('a'),e.lab('b')
    e(f's_cmp_eq_u32 s{S_CH}, 0',f's_cbranch_scc0 {la}'); arrive(e,C_S0); e(f's_branch {l2}',f'{la}:'); arrive(e,C_S1); e(f's_branch {l2}',f'{l1}:')
    e('s_add_u32 s41, s40, 9216','v_add_u32 v28, s41, v28',f's_cmp_eq_u32 s{S_CH}, 0',f's_cbranch_scc0 {lb}')
    wait_cnt(e,C_S0,1,29); l3=e.lab('k3'); e(f's_branch {l3}',f'{lb}:'); wait_cnt(e,C_S1,1,29); e(f'{l3}:')
    for q in range(3): e(f'ds_read_b128 {vr(Q+4*q,4)}, v28 offset:{1024*q}')
    e(f's_mul_i32 s41, s{S_CH}, {KCP}',f's_add_u32 s41, s41, {KC}',
      'v_lshlrev_b32 v14, 4, v1','v_lshl_add_u32 v14, v2, 3, v14','v_add_u32 v14, s41, v14',
      'v_lshlrev_b32 v15, 3, v1','v_add_u32 v15, 512, v15','v_lshlrev_b32 v16, 2, v1','v_add_u32 v17, 896, v16','v_add_u32 v16, 768, v16','v_add_u32 v18, 4, v15',
      f'v_cndmask_b32 v15, v15, v16, {HH}',f'v_cndmask_b32 v16, v18, v17, {HH}','v_add_u32 v15, s41, v15','v_add_u32 v16, s41, v16',
      'v_lshlrev_b32 v17, 1, v1','v_add_u32 v17, 1024, v17','v_mov_b32 v18, 1344','v_mov_b32 v19, 1280','v_cmp_eq_u32 vcc, 0, v1','v_cndmask_b32 v18, v18, v19, vcc',
      f'v_cndmask_b32 v17, v17, v18, {HH}','v_add_u32 v17, s41, v17','v_mov_b32 v18, s41','v_mov_b32 v19, 0','ds_write_b32 v18, v19 offset:1288','s_waitcnt lgkmcnt(1)')
    for r in range(12): e(f'v_add_f32 v{D+r}, v{D+r}, v{Q+r}')
    for k in range(6): e(f'v_cvt_pk_bf16_f32 v{Q+k}, v{D+2*k}, v{D+2*k+1}')
    for r in range(12):
        b,off=(14,2*r) if r<4 else (15,2*(r-4)) if r<6 else (16,2*(r-6)) if r<8 else (17,64*(r-8))
        e(f'ds_write_b16{"_d16_hi" if r&1 else ""} v{b}, v{Q+r//2} offset:{off}')
    e('s_waitcnt lgkmcnt(0)'); arrive(e,C_S2); e(f'{l2}:')
def gather_addrs(e,GA):
    e(f'v_lshl_add_u32 v6, s{S_W4}, 6, v0','v_sub_u32 v6, 255, v6')
    for gi in range(2):
        e(f'v_subrev_u32 v7, {gi}, v6','v_max_i32 v8, 0, v7','v_or_b32 v8, 16, v8','v_ffbh_u32 v8, v8','v_sub_u32 v8, 27, v8',
          'v_lshlrev_b32 v9, v8, v5','v_add_u32 v9, -1, v9','v_add_u32 v10, 1, v8','v_lshlrev_b32 v11, 8, v8',f'v_add_u32 v11, {KC}, v11','v_lshlrev_b32 v12, 3, v7')
        for i in range(8):
            a=GA+8*gi+i
            e(f'v_add_u32 v13, {7-i}, v12','v_bfe_u32 v14, v13, v8, 1','v_lshl_add_u32 v13, v13, 1, v9','v_add_u32 v13, v13, v14','v_lshrrev_b32 v13, v10, v13',f'v_lshl_add_u32 v{a}, v13, 1, v11')
            if gi: e('v_cmp_gt_i32 vcc, 0, v7',f'v_mov_b32 v14, {KC+1288}',f'v_cndmask_b32 v{a}, v{a}, v14, vcc')
def tbuild(e,GA):
    W,X,W_,X_=32,40,48,56
    e(f'v_lshl_add_u32 v6, s{S_W4}, 6, v0')
    e('v_lshlrev_b32 v7, 4, v6',f'v_add_u32 v7, {UT}, v7','v_mov_b32 v28, 0','v_mov_b32 v29, 0','v_mov_b32 v30, 0','v_mov_b32 v31, 0',
      'v_cmp_gt_u32 vcc, 160, v6','s_and_saveexec_b64 s[50:51], vcc',f'ds_write_b128 v7, v[28:31]',f'ds_write_b128 v7, v[28:31] offset:{UTP}','s_mov_b64 exec, -1')
    e('v_lshrrev_b32 v7, 2, v6','v_mul_u32_u24 v7, 80, v7','v_and_b32 v8, 3, v6','v_lshlrev_b32 v8, 4, v8',f'v_add3_u32 v7, v7, v8, s63')
    e('s_mov_b32 s40, 0x05040100','s_mov_b32 s41, 0x07060302')
    for k in range(4): e(f'v_perm_b32 v{W+k}, v{225+2*k}, v{224+2*k}, s40',f'v_perm_b32 v{W+4+k}, v{225+2*k}, v{224+2*k}, s41')
    e(f'ds_write_b128 v7, {vr(W,4)}',f'ds_write_b128 v7, {vr(W+4,4)} offset:{UTP}')
    l=e.lab('z'); e(f's_cmp_eq_u32 s{S_W4}, 3',f's_cbranch_scc0 {l}','v_bfe_u32 v8, v0, 2, 3')
    toff(e,8,9,10); e('v_and_b32 v8, 3, v0','v_add_u32 v9, v9, v8','v_lshlrev_b32 v9, 4, v9',f'v_mul_u32_u24 v8, {T_CH}, v2',f'v_add3_u32 v9, v9, v8, s50' if 0 else f'v_add_u32 v9, v9, v8',
      f'v_add_u32 v9, {T_BASE+256*16}, v9','ds_write_b128 v9, v[28:31]',f'{l}:')
    e('v_lshlrev_b32 v7, 4, v6',f'v_add_u32 v7, {T_BASE}, v7',f'v_add_u32 v8, {T_CH}, v7')
    for ch in range(2):
        for i in range(16): e(f'ds_read_u16 v{64+i}, v{GA+i} offset:{ch*KCP}')
        e('s_waitcnt lgkmcnt(0)')
        for k in range(8): e(f'v_lshl_or_b32 v{W+k}, v{65+2*k}, 16, v{64+2*k}')
        for k in range(6): e(f'v_alignbit_b32 v{X+k}, v{W+k+1}, v{W+k}, 16',f'v_mov_b32 v{W_+k}, v{W+k+1}',f'v_alignbit_b32 v{X_+k}, v{W+k+2}, v{W+k+1}, 16')
        src={0:W,4:W+2,2:W_,6:W_+2,1:X,5:X+2,3:X_,7:X_+2}
        for t in range(8):
            s=(t+1)&7; g=1 if t==7 else 0
            e(f'ds_write_b128 v{7+ch}, {vr(src[t],4)} offset:{(T_OFF[s]+g)*16}')
def toff(e,vs,vd,vt):
    e(f'v_add_u32 v{vt}, -1, v{vs}',f'v_and_b32 v{vt}, 3, v{vt}',f'v_mul_u32_u24 v{vt}, 3, v{vt}',f'v_cmp_eq_u32 vcc, 0, v{vs}',f'v_cndmask_b32 v{vt}, v{vt}, v{vs}, vcc',
      f'v_mul_u32_u24 v{vd}, 273, v{vs}',f'v_add_u32 v{vd}, v{vd}, v{vt}')
def conv(e):
    Y=32; RG=64
    e('v_sub_u32 v8, 0, v1','v_and_b32 v8, 7, v8'); toff(e,8,9,10)
    e('v_add_u32 v8, 7, v1','v_lshrrev_b32 v8, 3, v8','v_sub_u32 v9, v9, v8','v_add_u32 v9, v9, v2',f's_lshl_b32 s40, s{S_NH}, 1','s_add_u32 s40, s40, 256','v_add_u32 v9, s40, v9',
      'v_lshlrev_b32 v9, 4, v9',f's_mul_i32 s40, s{S_CH}, {T_CH}',f's_add_u32 s40, s40, {T_BASE-4032}','v_add_u32 v9, s40, v9',
      'v_add_u32 v8, 1, v1','v_mul_u32_u24 v8, 80, v8','v_lshl_add_u32 v8, v2, 4, v8',f's_mul_i32 s40, s{S_CH}, {UTP}',f's_lshl_b32 s41, s{S_NH}, 5','s_add_u32 s40, s40, s41',
      f's_add_u32 s40, s40, {UT}','v_add_u32 v8, s40, v8')
    def rd(d):
        b=RG+16*(d%3)
        e(f'ds_read_b128 {vr(b,4)}, v9 offset:{4032-64*d}',f'ds_read_b128 {vr(b+4,4)}, v8 offset:{(31-d)*80}',
          f'ds_read_b128 {vr(b+8,4)}, v8 offset:{(31-d)*80+2560}',f'ds_read_b128 {vr(b+12,4)}, v9 offset:{4032-64*(d+32)}')
    rd(0); rd(1)
    for d in range(32):
        if d+2<32: rd(d+2); e('s_waitcnt lgkmcnt(8)')
        elif d==30: e('s_waitcnt lgkmcnt(4)')
        else: e('s_waitcnt lgkmcnt(0)')
        b=RG+16*(d%3)
        e(mfma(Y+16,b,b+8,None if d==0 else Y+16),mfma(Y,b,b+4,None if d==0 else Y),mfma(Y+16,b+12,b+4,Y+16))
    e('s_nop 7','s_nop 7')
    l=e.lab('sw'); e(f's_cmp_eq_u32 s{S_NH}, 0',f's_cbranch_scc1 {l}')
    for r in range(16): e(f'v_swap_b32 v{Y+r}, v{Y+16+r}')
    e(f'{l}:',f's_lshl_b32 s40, s{S_W4}, 12',f's_cmp_eq_u32 s{S_W4}, 3',f's_cselect_b32 s40, {XC3}, s40',
      f's_xor_b32 s41, s{S_W4}, 1','s_lshl_b32 s42, s41, 12','s_cmp_eq_u32 s41, 3',f's_cselect_b32 s41, {XC3}, s42',
      'v_lshlrev_b32 v10, 4, v0','v_add_u32 v11, s40, v10','v_add_u32 v10, s41, v10')
    for q in range(4): e(f'ds_write_b128 v11, {vr(Y+16+4*q,4)} offset:{1024*q}')
    e('s_waitcnt lgkmcnt(0)','s_waitcnt vmcnt(0)'); arrive(e,C_S4); wait_cnt(e,C_S4,4,12,2)
def conv_epi(e):
    Y=32; U=64; T=72
    for q in range(4): e(f'ds_read_b128 {vr(Y+16+4*q,4)}, v10 offset:{1024*q}')
    e(f's_mul_i32 s40, s{S_CH}, {UTP}',f's_mul_i32 s41, s{S_NH}, 2560','s_add_u32 s40, s40, s41',f's_add_u32 s40, s40, {UT+2560}',
      'v_mul_u32_u24 v8, 80, v1','v_lshl_add_u32 v8, v2, 3, v8','v_add_u32 v8, s40, v8')
    for q in range(4): e(f'ds_read_b64 {vr(U+2*q,2)}, v8 offset:{16*q}')
    e(f's_lshl_b32 s40, s{S_D}, 12',f's_lshl_b32 s41, s{S_NH}, 11','s_add_u32 s40, s40, s41',f's_add_u32 s40, s40, {AT_OFF}',
      'v_lshlrev_b32 v9, 6, v1','v_lshl_add_u32 v9, v2, 3, v9','v_add_u32 v9, s40, v9','s_waitcnt lgkmcnt(0)')
    for r in range(16): e(f'v_add_f32 v{Y+r}, v{Y+r}, v{Y+16+r}')
    for k in range(8):
        e(f'v_cvt_pk_bf16_f32 v{T}, v{Y+2*k}, v{Y+2*k+1}'); unpack(e,T+2,T+3,U+k)
        e(f'v_mul_f32 v{T+2}, v233, v{T+2}',f'v_mul_f32 v{T+3}, v233, v{T+3}',f'v_cvt_pk_bf16_f32 v{T+1}, v{T+2}, v{T+3}')
        unpack(e,T+2,T+3,T); unpack(e,T+4,T+5,T+1)
        e(f'v_add_f32 v{T+2}, v{T+2}, v{T+4}',f'v_add_f32 v{T+3}, v{T+3}, v{T+5}',f'v_cvt_pk_bf16_f32 v{U+k}, v{T+2}, v{T+3}')
    for q in range(4): e(f'global_store_dwordx2 v9, {vr(U+2*q,2)}, {sp(S_WS)} offset:{16*q} sc1')
def wo_addr(e):
    e(f's_mul_i32 s41, s{S_C4}, 224')
    for i in range(7):
        e(f'v_add_u32 v6, {64*i}, v0','v_mul_u32_u24 v7, 0x4925, v6','v_lshrrev_b32 v7, 18, v7','v_mul_u32_u24 v12, 14, v7','v_sub_u32 v6, v6, v12','v_lshlrev_b32 v6, 4, v6',
          'v_mul_u32_u24 v7, 896, v7',f'v_add3_u32 v{240+i}, v6, v7, s41')
def wo_dma(e,half):
    e(f's_mov_b32 s44, s{S_WO}',f's_mov_b32 s45, s{S_WO+1}','s_mov_b32 s46, 401408','s_mov_b32 s47, 0x20000')
    for k in range(2):
        l=e.lab('g')
        e(f's_add_u32 s42, s{S_W4}, {4*k}')
        if k==1: e('s_cmp_lt_u32 s42, 7',f's_cbranch_scc0 {l}')
        e('s_mul_i32 s48, s42, 7168',f's_add_u32 s48, s48, {R2 if half else R1}',f's_add_u32 s42, s42, {7*half}','s_mul_i32 s43, s42, 28672')
        for i in range(7): e(f's_add_u32 m0, s48, {1024*i}','s_nop 0',f'buffer_load_dwordx4 v{240+i}, s[44:47], s43 offen lds')
        e(f'{l}:')
WF=128
def OFr(f): return 64+4*f if f<16 else 192+4*(f-16)
def fr(e,f,dst,base):
    off=(28*(f//2)+16*(f&1))*224
    e(f'ds_read_b64_tr_b16 {vr(dst,2)}, v{base} offset:{off}',f'ds_read_b64_tr_b16 {vr(dst+2,2)}, v{base} offset:{off+1792}')
def wo_trbase(e,vd):
    e(f'v_lshrrev_b32 v{vd}, 2, v0',f'v_and_b32 v{vd}, 3, v{vd}',f'v_lshl_add_u32 v{vd}, v2, 2, v{vd}',f'v_mul_u32_u24 v{vd}, 224, v{vd}','v_bfe_u32 v13, v0, 4, 1','v_lshlrev_b32 v13, 5, v13',
      'v_and_b32 v12, 3, v0','v_lshlrev_b32 v12, 3, v12',f'v_add3_u32 v{vd}, v{vd}, v13, v12',f's_mul_i32 s40, s{S_W4}, 56',f's_add_u32 s40, s40, {R1}',f'v_add_u32 v{vd}, s40, v{vd}')
def r1_reads(e):
    wo_trbase(e,14)
    for f in range(16): fr(e,f,WF+4*f,14)
def spath(e):
    GA=208
    stamp(e,0)
    e(f's_sub_u32 s{S_W4}, s{S_WAVE}, 4',f's_lshr_b32 s{S_CH}, s{S_W4}, 1',f's_and_b32 s{S_NH}, s{S_W4}, 1',
      f's_mul_i32 s{S_D0}, s{S_XCD}, 56',f's_lshl_b32 s40, s{S_SLOT}, 1',f's_add_u32 s{S_D0}, s{S_D0}, s40',f's_add_u32 s{S_D}, s{S_D0}, s{S_CH}',
      f's_lshr_b32 s{S_C4}, s{S_XCD}, 1',f's_and_b32 s40, s{S_XCD}, 1','s_lshl_b32 s40, s40, 5',f's_add_u32 s{S_TAU}, s40, s{S_SLOT}',
      f'v_cmp_eq_u32 {HH}, 1, v2',f's_mov_b32 s63, {UT+2560}')
    e(f's_cmp_ge_u32 s{S_SLOT}, 28','s_cbranch_scc1 SNOSSM')
    e(f's_lshl_b32 s40, s{S_D}, 9',f's_lshl_b32 s41, s{S_NH}, 8','s_add_u32 s40, s40, s41','v_lshl_add_u32 v6, v0, 2, s40',f's_lshl_b32 s41, s{S_D}, 1','v_mov_b32 v7, s41',
      f'global_load_ushort v232, v7, {sp(S_DT)}',f'global_load_ushort v233, v7, {sp(S_DS)}')
    for i,p in enumerate((S_LA,S_AI,S_CR,S_CI)): e(f'global_load_dword v{8+i}, v6, {sp(p)}')
    e('s_barrier')
    wo_addr(e)
    dstamp(e,3)
    e('s_waitcnt vmcnt(0)')
    dstamp(e,4)
    for i in range(4): e(f'v_mov_b32 v{234+i}, v{8+i}')
    gather_addrs(e,GA)
    for i in range(4): e(f'v_mov_b32 v{8+i}, v{234+i}')
    stamp(e,1)
    kgen(e)
    get_nonce(e)
    stamp(e,2)
    gate_mfma(e)
    wait_cnt(e,C_S2,2,6,4); wait_cnt(e,C_RING,4,6,8)
    stamp(e,3)
    wo_dma(e,0)
    tbuild(e,GA)
    e('s_waitcnt lgkmcnt(0)'); arrive(e,C_S3); wait_cnt(e,C_S3,4,6,2)
    stamp(e,4)
    conv(e)
    stamp(e,5)
    r1_reads(e)
    conv_epi(e)
    arrive(e,C_S5)
    e(f'v_cndmask_b32 v{WF+62}, v{WF+62}, v28, {HH}' if 0 else 'v_mov_b32 v12, 0',f'v_cndmask_b32 v{WF+62}, v{WF+62}, v12, {HH}',f'v_cndmask_b32 v{WF+63}, v{WF+63}, v12, {HH}')
    wo_dma(e,1)
    stamp(e,6)
    sk=e.lab('sk'); s4=e.lab('s4'); s5=e.lab('s5')
    e(f's_cmp_eq_u32 s{S_W4}, 3',f's_cbranch_scc1 {s4}','s_waitcnt vmcnt(14)',f's_branch {s5}',f'{s4}:','s_waitcnt vmcnt(7)',f'{s5}:'); arrive_rtn(e,C_AD,6,3,sk)
    e(f's_mul_i32 s40, s{S_XCD}, 28',f's_add_u32 s40, s40, s{S_SLOT}','s_lshl_b32 s40, s40, 3',f's_add_u32 s40, s40, {AFLG}','v_mov_b32 v6, s40',
      f'v_mov_b32 v8, s{S_N}',f'v_mov_b32 v9, s{S_N2}','s_mov_b64 exec, 1',f'global_store_dwordx2 v6, v[8:9], {sp(S_WS)} sc1','s_mov_b64 exec, -1',f'{sk}:')
    e('s_branch SFIN','SNOSSM:','s_barrier')
    wo_addr(e); gate_loads(e); e('s_waitcnt vmcnt(0)')
    get_nonce(e); gate_mfma(e); wait_cnt(e,C_RING,4,6,8); wo_dma(e,0); wo_dma(e,1)
    e('s_waitcnt vmcnt(0)'); arrive(e,C_S4); wait_cnt(e,C_S4,4,12,2)
    r1_reads(e); e('s_waitcnt lgkmcnt(0)'); arrive(e,C_S5)
    e('v_mov_b32 v12, 0',f'v_cndmask_b32 v{WF+62}, v{WF+62}, v12, {HH}',f'v_cndmask_b32 v{WF+63}, v{WF+63}, v12, {HH}')
    e('SFIN:')
    final(e)
def final(e):
    D=16; AV=32; RG=48
    e(f'v_lshlrev_b32 v7, 2, v1',f'v_add_u32 v7, {GL}, v7')
    wait_cnt(e,C_S6,4,12,2)
    for k in range(4): e(f'ds_read_b32 v{D+k}, v7 offset:{128*k}')
    e('s_waitcnt lgkmcnt(0)',f'v_add_f32 v{D}, v{D}, v{D+1}',f'v_add_f32 v{D+2}, v{D+2}, v{D+3}',f'v_add_f32 v{D}, v{D}, v{D+2}',
      f'v_cvt_pk_bf16_f32 v{D}, v{D}, v{D}',f'v_lshlrev_b32 v{D}, 16, v{D}',f'v_mul_f32 v{D}, 0xbfb8aa3b, v{D}',f'v_exp_f32 v{D}, v{D}','s_nop 0',f'v_add_f32 v{D}, 1.0, v{D}',
      f'v_rcp_f32 v{D}, v{D}','s_nop 0',f'v_cvt_pk_bf16_f32 v{D}, v{D}, v{D}',f'v_lshlrev_b32 v8, 16, v{D}','v_sub_f32 v9, 1.0, v8','v_cvt_pk_bf16_f32 v9, v9, v9','v_lshlrev_b32 v9, 16, v9')
    stamp(e,7)
    e(f's_mul_i32 s40, s{S_C4}, 448',f's_add_u32 s40, s40, {AFLG}','v_min_u32 v6, 55, v0','v_lshl_add_u32 v6, v6, 3, s40')
    poll_flags(e,6,12,8)
    e(f's_mul_i32 s40, s{S_C4}, 112',f's_mul_i32 s41, s{S_W4}, 28','s_add_u32 s40, s40, s41','s_lshl_b32 s40, s40, 12',f's_lshl_b32 s41, s{S_TAU}, 6','s_add_u32 s40, s40, s41',f's_add_u32 s40, s40, {AT_OFF}',
      'v_lshlrev_b32 v6, 14, v2','v_lshl_add_u32 v6, v1, 1, v6','v_add_u32 v6, s40, v6')
    for r in range(16):
        ch=8*(r//4)+r%4
        if r>=12: e(f'v_add_u32 v7, {ch*4096}, v6',f'v_subrev_u32 v12, 16384, v7',f'v_cndmask_b32 v7, v7, v12, {HH}')
        else: e(f'v_add_u32 v7, {ch*4096}, v6')
        e(f'global_load_ushort v{AV+r}, v7, {sp(S_WS)} sc1')
    l=e.lab('n0'); e('s_or_b32 s40, s2, '+f's{S_W4}','s_cmp_eq_u32 s40, 0',f's_cbranch_scc0 {l}',
      'v_min_u32 v7, 47, v0',f'v_lshlrev_b32 v7, 3, v7',f'v_add_u32 v7, {QFLG}, v7','s_mov_b32 s41, 16','NQL:')
    poll_flags(e,7,12,8)
    e('v_add_u32 v7, 512, v7','s_sub_u32 s41, s41, 1','s_cmp_lg_u32 s41, 0','s_cbranch_scc1 NQL',f'{l}:')
    e('s_waitcnt vmcnt(0)')
    for r in range(0,16,2):
        e(f'v_lshlrev_b32 v{AV+r}, 16, v{AV+r}',f'v_lshlrev_b32 v{AV+r+1}, 16, v{AV+r+1}',f'v_mul_f32 v{AV+r}, v8, v{AV+r}',f'v_mul_f32 v{AV+r+1}, v8, v{AV+r+1}',
          f'v_cvt_pk_bf16_f32 v12, v{AV+r}, v{AV+r+1}'); unpack(e,AV+r,AV+r+1,12)
    e(f's_lshr_b32 s40, s{S_TAU}, 2','s_lshl_b32 s40, s40, 7',f's_add_u32 s40, s40, {OFLG}','v_and_b32 v6, 15, v0','v_lshl_add_u32 v6, v6, 3, s40',
      f's_lshl_b32 s40, s{S_TAU}, 15',f's_add_u32 s40, s40, {O_OFF}','v_lshl_add_u32 v7, v0, 4, s40',
      f's_lshl_b32 s40, s{S_TAU}, 5','v_add_u32 v14, s40, v1','v_mul_u32_u24 v14, 896, v14',f's_mul_i32 s40, s{S_C4}, 224',f's_mul_i32 s41, s{S_W4}, 56','s_add_u32 s40, s40, s41',
      'v_lshl_add_u32 v15, v2, 3, s40','v_add_u32 v14, v14, v15')
    wo_trbase(e,11); e(f'v_add_u32 v11, {R2-R1}, v11')
    arrive(e,C_FB); wait_cnt(e,C_FB,4,12,2)
    def fr2(f): fr(e,f-16,RG+4*(f&3),11)
    for f in range(16,20): fr2(f)
    stamp(e,8)
    e('s_barrier')
    stamp(e,9)
    poll_flags(e,6,12)
    stamp(e,10)
    for f in range(32):
        if f and f%4==0: e('v_add_u32 v7, 4096, v7')
        e(f'global_load_dwordx4 {vr(OFr(f),4)}, v7, {sp(S_WS)} offset:{1024*(f&3)} sc1')
    for f in range(32):
        e(f's_waitcnt vmcnt({31-f})')
        if f<16: e(mfma(D,WF+4*f,OFr(f),None if f==0 else D))
        else:
            rem=min(31-f,3); e(f's_waitcnt lgkmcnt({2*rem})')
            if f==31: e('v_mov_b32 v12, 0',f'v_cndmask_b32 v{RG+14}, v{RG+14}, v12, {HH}',f'v_cndmask_b32 v{RG+15}, v{RG+15}, v12, {HH}','s_nop 1')
            e(mfma(D,RG+4*(f&3),OFr(f),D))
            if f+4<32: e('s_nop 7'); fr2(f+4)
    stamp(e,11)
    e('s_nop 7','s_nop 7')
    for k in range(8):
        e(f'v_cvt_pk_bf16_f32 v12, v{D+2*k}, v{D+2*k+1}'); unpack(e,10,11,12)
        e('v_mul_f32 v10, v9, v10','v_mul_f32 v11, v9, v11','v_cvt_pk_bf16_f32 v12, v10, v11'); unpack(e,10,11,12)
        e(f'v_add_f32 v10, v10, v{AV+2*k}',f'v_add_f32 v11, v11, v{AV+2*k+1}',f'v_cvt_pk_bf16_f32 v{WF+k}, v10, v11')
    for q in range(4):
        if q==3: e('s_mov_b32 exec_hi, 0')
        e(f'global_store_dwordx2 v14, {vr(WF+2*q,2)}, {sp(S_OUT)} offset:{16*q}')
    e('s_mov_b64 exec, -1')
    l=e.lab('n1'); e('s_or_b32 s40, s2, '+f's{S_W4}','s_cmp_eq_u32 s40, 0',f's_cbranch_scc0 {l}','v_mov_b32 v6, 0',f'v_mov_b32 v7, s{S_N}','s_mov_b64 exec, 1',
      f'global_store_dword v6, v7, {sp(S_WS)} sc1','s_mov_b64 exec, -1',f'{l}:')
    stamp(e,12); dump_stamps(e,14,16)
```

```python
from gen_common import *
S_TT,S_C,S_H,S_QT=32,33,52,53
import os
APL=int(os.environ.get('APL','3'))
KVF=os.environ.get('KVF','sc1')
PERM=int(os.environ.get('PERM','1'))
def PRIO_LOOP(e): e(f's_setprio {APL}')
def qkv(e):
    XR=128; ACC=16; XF=64; WF=80
    stamp(e,0)
    e('s_setprio 3')
    e(f's_lshl_b32 s{S_H}, s{S_XCD}, 1',f's_lshr_b32 s40, s{S_SLOT}, 4',f's_add_u32 s{S_H}, s{S_H}, s40',f's_and_b32 s{S_QT}, s{S_SLOT}, 15',f's_mov_b32 s{S_TT}, s{S_QT}')
    e(f's_mov_b32 s44, s{S_W}',f's_mov_b32 s45, s{S_W+1}','s_mov_b32 s46, 1204224','s_mov_b32 s47, 0x20000')
    e(f's_lshl_b32 s40, s{S_TT}, 7',f's_lshl_b32 s41, s{S_WAVE}, 5','s_add_u32 s40, s40, s41','s_mul_i32 s40, s40, 896',
      'v_lshrrev_b32 v6, 3, v0','v_mul_u32_u24 v6, 896, v6','v_and_b32 v7, 7, v0','v_lshlrev_b32 v7, 4, v7','v_add3_u32 v104, v6, v7, s40',
      'v_add_u32 v105, 7168, v104','v_add_u32 v106, 14336, v104','v_add_u32 v107, 21504, v104')
    e(f's_lshl_b32 s41, s{S_WAVE}, 4','s_mul_i32 s41, s41, 2688',f's_mul_i32 s43, s{S_H}, 56','s_and_b32 s43, s43, -16','s_add_u32 s41, s41, s43')
    for i in range(3):
        e(f'v_add_u32 v6, {64*i}, v0','v_mul_u32_u24 v7, 0x5556, v6','v_lshrrev_b32 v7, 18, v7',
          'v_mul_u32_u24 v8, 12, v7','v_sub_u32 v6, v6, v8','v_lshrrev_b32 v8, 2, v6','v_mul_u32_u24 v8, 896, v8','v_and_b32 v6, 3, v6','v_lshl_add_u32 v6, v6, 4, v8',
          'v_mul_u32_u24 v7, 2688, v7',f'v_add3_u32 v{108+i}, v6, v7, s41')
    e('v_lshrrev_b32 v6, 4, v0','v_and_b32 v7, 15, v0',f's_lshl_b32 s41, s{S_WAVE}, 4','v_add_u32 v7, s41, v7','v_lshl_add_u32 v8, v6, 6, v7','v_lshlrev_b32 v8, 1, v8',
      'v_min_u32 v9, 2, v6','v_lshl_add_u32 v9, v9, 6, v7','v_lshlrev_b32 v9, 1, v9','v_add_u32 v9, 512, v9',
      'v_mul_u32_u24 v7, 192, v7','v_mul_u32_u24 v6, 12288, v6',f's_and_b32 s41, s{S_H}, 1','s_lshl_b32 s41, s41, 3','s_add_u32 s41, s41, 56','v_add3_u32 v114, v6, v7, s41')
    e(f's_mul_i32 s42, s{S_WAVE}, 3072','s_barrier')
    e(f'global_load_ushort v112, v8, {sp(S_GW)}',f'global_load_ushort v113, v9, {sp(S_GW)}')
    for m in range(7):
        for rb in range(4):
            e(f'global_load_dwordx4 {vr(XR+16*m+4*rb,4)}, v{104+rb}, {sp(S_X)} offset:{128*m}')
        for i in range(3):
            e(f's_add_u32 m0, s42, {W_BASE+m*12288+i*1024}',f's_mov_b32 s43, {m*172032}',
              f'buffer_load_dwordx4 v{108+i}, s[44:47], s43 offen lds')
    if PROF:
        stamp(e,11); e('s_waitcnt vmcnt(49)'); stamp(e,12); e('s_waitcnt vmcnt(45)'); stamp(e,13)
    e(f's_lshl_b32 s40, s{S_WAVE}, 12',f's_add_u32 s40, s40, {XS_BASE}',
      'v_lshrrev_b32 v6, 3, v0','v_lshlrev_b32 v6, 7, v6','v_add_u32 v6, s40, v6',
      'v_lshrrev_b32 v7, 4, v0','v_and_b32 v8, 7, v0','v_xor_b32 v9, v8, v7','v_lshlrev_b32 v8, 4, v9','v_add_u32 v8, v6, v8',
      'v_xor_b32 v9, 4, v9','v_lshlrev_b32 v9, 4, v9','v_add_u32 v9, v6, v9')
    e('v_lshrrev_b32 v6, 3, v1','v_lshlrev_b32 v6, 10, v6','v_and_b32 v7, 7, v1','v_lshlrev_b32 v7, 7, v7','v_add3_u32 v6, v6, v7, s40',
      'v_lshrrev_b32 v7, 1, v1','v_and_b32 v7, 7, v7','v_xor_b32 v7, v7, v2')
    for sp_ in range(4):
        e(f'v_xor_b32 v{10+sp_}, {2*sp_}, v7',f'v_lshlrev_b32 v{10+sp_}, 4, v{10+sp_}',f'v_add_u32 v{10+sp_}, v6, v{10+sp_}')
    e('v_lshrrev_b32 v6, 2, v0','v_and_b32 v6, 3, v6','v_lshlrev_b32 v7, 3, v2','v_add_u32 v6, v6, v7','v_mul_u32_u24 v6, 192, v6',
      'v_lshrrev_b32 v7, 4, v0','v_and_b32 v7, 1, v7','v_lshlrev_b32 v7, 5, v7','v_and_b32 v14, 3, v0','v_lshlrev_b32 v14, 3, v14',
      'v_add3_u32 v14, v14, v6, v7',f's_and_b32 s41, s{S_H}, 1','s_lshl_b32 s41, s41, 3','v_add_u32 v14, s41, v14',f'v_add_u32 v15, 49152, v14')
    e('v_cmp_eq_u32 s[54:55], 1, v2','v_cmp_le_u32 s[56:57], 28, v1')
    groups={0:(0,1,C_W0),2:(2,4,C_W1),5:(5,6,C_W2)}
    def wread(m,s,buf):
        out=[]
        for i in range(3):
            off=m*12288+i*64+s*3072; b=14
            if m>=4: off-=49152; b=15
            out.append(f'ds_read_b64_tr_b16 {vr(WF+12*buf+4*i,2)}, v{b} offset:{off}')
            out.append(f'ds_read_b64_tr_b16 {vr(WF+12*buf+4*i+2,2)}, v{b} offset:{off+768}')
        return out
    def body(orient):
        for m in range(7):
            if m in groups:
                last=groups[m][1]
                e(f's_waitcnt vmcnt({7*(6-last)})')
                if m==0: e('s_mov_b32 exec_hi, 0','ds_write_b16 v114, v112','s_mov_b32 exec_hi, -1')
                if m==2: e('s_mov_b32 exec_lo, 0','ds_write_b16 v114, v112','s_mov_b64 exec, 0xffff','ds_write_b16 v114, v113 offset:49152','s_mov_b64 exec, -1')
                if m==5: e('s_mov_b32 exec_lo, 0xffff0000','s_mov_b32 exec_hi, 0xffff','ds_write_b16 v114, v113 offset:49152','s_mov_b64 exec, -1')
                arrive(e,groups[m][2])
            for rb in range(4):
                e(f'ds_write_b128 v{8+(rb&1)}, {vr(XR+16*m+4*rb,4)} offset:{rb*1024}')
            for s in range(4):
                e(f'ds_read_b128 {vr(XF+4*s,4)}, v{10+s}')
            if m in groups:
                wait_cnt(e,groups[m][2],4,6)
                if m==0: stamp(e,1)
                if m==5: stamp(e,2)
            e(*wread(m,0,0))
            for s in range(4):
                buf=s&1
                if s<3:
                    e(*wread(m,s+1,buf^1)); e('s_waitcnt lgkmcnt(6)')
                else: e('s_waitcnt lgkmcnt(0)')
                for i in range(3):
                    c=None if (m==0 and s==0) else ACC+16*i
                    if orient[i]=='T': e(mfma(ACC+16*i,WF+12*buf+4*i,XF+4*s,c))
                    else: e(mfma(ACC+16*i,XF+4*s,WF+12*buf+4*i,c))
    body('TTN')
    arrive(e,C_RING); stamp(e,3)
    e('v_mov_b32 v104, 0','v_mov_b32 v105, 0x3f803f80','v_mov_b32 v106, 0x3f80',
      'v_cmp_eq_u32 vcc, 28, v1','v_cndmask_b32 v107, v104, v105, vcc',
      f's_lshl_b32 s40, s{S_QT}, 2',f's_add_u32 s40, s40, s{S_WAVE}','s_lshl_b32 s40, s40, 11',f's_lshl_b32 s41, s{S_H}, 17','s_add_u32 s40, s40, s41',f's_add_u32 s40, s40, {QKV_OFF+(16<<17)}',
      'v_lshlrev_b32 v110, 4, v0','v_add_u32 v108, s40, v110',f'v_add_u32 v109, {16<<17}, v108',f's_lshl_b32 s40, s{S_WAVE}, 11','v_add_u32 v111, s40, v110','s_nop 7')
    for i in (1,2,0):
        A=ACC+16*i; P=64+8*i
        if i==0:
            lg=e.lab('g'); e(f's_cmp_eq_u32 s{S_H}, s{S_QT}',f's_cbranch_scc0 {lg}',f's_lshl_b32 s40, s{S_QT}, 9',f's_lshl_b32 s41, s{S_WAVE}, 7','s_add_u32 s40, s40, s41',f's_add_u32 s40, s40, {G_OFF}',
              'v_lshl_add_u32 v6, v1, 2, s40','s_mov_b32 exec_lo, 0',f'global_store_dword v6, v{A+12}, {sp(S_WS)} sc1','s_mov_b32 exec_lo, -1','s_nop 0',f'{lg}:')
            for r in range(16): e(f'v_mul_f32 v{A+r}, 0x3e8b97f6, v{A+r}')
        for j in range(8): e(f'v_cvt_pk_bf16_f32 v{P+j}, v{A+2*j}, v{A+2*j+1}')
        if i==0:
            e(f'v_cndmask_b32 v{P+6}, v{P+6}, v104, s[54:55]',f'v_cndmask_b32 v{P+7}, v{P+7}, v104, s[54:55]',
              f'ds_write_b128 v111, {vr(P,4)}',f'ds_write_b128 v111, {vr(P+4,4)} offset:1024')
            continue
        if i==1: e(f'v_cndmask_b32 v{P+6}, v{P+6}, v105, s[54:55]',f'v_cndmask_b32 v{P+7}, v{P+7}, v106, s[54:55]')
        else:
            for j in range(8): e(f'v_cndmask_b32 v{P+j}, v{P+j}, v107, s[56:57]')
        e(f'global_store_dwordx4 v{107+i}, {vr(P,4)}, {sp(S_WS)} sc1',f'global_store_dwordx4 v{107+i}, {vr(P+4,4)}, {sp(S_WS)} offset:1024 sc1')
    e('s_waitcnt lgkmcnt(0)'); arrive(e,C_W0)
    get_nonce(e)
    wait_cnt(e,C_W0,8,6)
    for i in range(4):
        for c in range(2): e(f'ds_read_b128 {vr(16+8*i+4*c,4)}, v110 offset:{i*2048+c*1024}')
    sk=e.lab('sk')
    e('s_waitcnt vmcnt(0) lgkmcnt(0)')
    arrive_rtn(e,C_QD,6,3,sk)
    wait_cnt(e,C_OD,4,6)
    e(f's_lshl_b32 s40, s{S_H}, 7',f's_lshl_b32 s41, s{S_QT}, 3','s_add_u32 s40, s40, s41',f's_add_u32 s40, s40, {QFLG}','v_mov_b32 v6, s40',f'v_mov_b32 v8, s{S_N}',f'v_mov_b32 v9, s{S_N2}',
      's_mov_b64 exec, 1',f'global_store_dwordx2 v6, v[8:9], {sp(S_WS)} sc1','s_mov_b64 exec, -1',f'{sk}:')

def attn(e):
    Q=16; O=48; S=112; P=144; KV=160
    VK,VV,VKM=8,9,10
    S_FB,S_RT,S_LP=58,59,60
    e(f's_mov_b32 s{S_FB}, 0',f's_mov_b32 s{S_RT}, 4')
    e(f's_lshl_b32 s40, s{S_H}, 7',f's_add_u32 s40, s40, {QFLG}','v_and_b32 v6, 15, v0','v_lshl_add_u32 v6, v6, 3, s40')
    e(f's_lshl_b32 s40, s{S_H}, 17',f's_add_u32 s40, s40, {QKV_OFF}','v_lshlrev_b32 v7, 4, v0',
      f's_lshl_b32 s41, s{S_WAVE}, 15','s_add_u32 s41, s41, s40',f's_add_u32 s61, s41, {16<<17}')
    for r in range(64): e(f'v_mov_b32 v{O+r}, 0')
    stamp(e,4)
    poll_one(e,6,224,C_AP,S_WAVE,int(os.environ.get('PSL','2')))
    stamp(e,5)
    PRIO_LOOP(e)
    e('RERUN:')
    e('v_lshlrev_b32 v7, 4, v0',f'v_add_u32 v{VK}, s61, v7',f'v_add_u32 v{VKM}, {15*2048}, v{VK}')
    def loadkv(slot):
        b=KV+16*slot
        e(f'v_add_u32 v{VV}, {16<<17}, v{VK}',
          f'global_load_dwordx4 {vr(b,4)}, v{VK}, {sp(S_WS)} {KVF}',f'global_load_dwordx4 {vr(b+4,4)}, v{VK}, {sp(S_WS)} offset:1024 {KVF}',
          f'global_load_dwordx4 {vr(b+8,4)}, v{VV}, {sp(S_WS)} {KVF}',f'global_load_dwordx4 {vr(b+12,4)}, v{VV}, {sp(S_WS)} offset:1024 {KVF}',
          f'v_add_u32 v{VK}, 2048, v{VK}',f'v_min_u32 v{VK}, v{VK}, v{VKM}')
    for sl in range(3): loadkv(sl)
    if int(os.environ.get('TOUCH','0')):
        e(f's_lshl_b32 s41, s{S_QT}, 13',f's_and_b32 s42, s{S_WAVE}, 1','s_lshl_b32 s42, s42, 12','s_add_u32 s41, s41, s42',f's_lshr_b32 s42, s{S_WAVE}, 1',f's_add_u32 s42, s42, 1','s_lshl_b32 s42, s42, 21',
          's_add_u32 s41, s41, s42',f's_lshl_b32 s42, s{S_H}, 17','s_add_u32 s41, s41, s42',f's_add_u32 s41, s41, {QKV_OFF}','v_lshl_add_u32 v12, v0, 6, s41',f'global_load_dword v225, v12, {sp(S_WS)} sc1')
    for r in range(8): e(f'v_mov_b32 v{KV+48+8+r}, 0',f'v_mov_b32 v{P+8+r}, 0')
    e('s_waitcnt vmcnt(8)')
    e(mfma(S,KV,Q),mfma(S,KV+4,Q+4,S),'s_nop 7','s_nop 7')
    stamp(e,6); stampc(e,9)
    e(f's_mov_b32 s{S_LP}, 4','s_mov_b32 s49, 0x07060302','ALOOP:')
    for kt in range(4):
        for i in range(4):
            n=kt*4+i; cur=n&1; nx=cur^1
            Sc=S+16*cur; Sn=S+16*nx; Pc=P+8*cur; Pp=P+8*nx
            if i<3: kb=KV+16*kt; qb=Q+8*(i+1)
            else: kb=KV+16*((kt+1)&3); qb=Q
            if i>0: vb=KV+16*kt+8; ob=O+16*(i-1)
            else: vb=KV+16*((kt+3)&3)+8; ob=O+48
            M=[mfma(Sn,kb,qb),mfma(Sn,kb+4,qb+4,Sn),mfma(ob,vb,Pp,ob),mfma(ob,vb+4,Pp+4,ob)]
            if i==3: e('s_waitcnt vmcnt(8)')
            ex=[f'v_exp_f32 v{Sc+r}, v{Sc+r}' for r in range(16)]
            if PERM: cv=[f'v_perm_b32 v{Pc+j}, v{Sc+2*j+1}, v{Sc+2*j}, s49' for j in range(8)]
            else: cv=[f'v_cvt_pk_bf16_f32 v{Pc+j}, v{Sc+2*j}, v{Sc+2*j+1}' for j in range(8)]
            e(M[0],ex[0],ex[1],ex[2],ex[3],cv[0],M[2],ex[4],ex[5],cv[1],ex[6],ex[7],cv[2],M[1],ex[8],ex[9],cv[3],ex[10],ex[11],cv[4],M[3],
              ex[12],ex[13],cv[5],ex[14],ex[15],cv[6],'s_nop 0',cv[7])
            if i==0: loadkv((kt+3)&3)
    e(f's_sub_u32 s{S_LP}, s{S_LP}, 1',f's_cmp_lg_u32 s{S_LP}, 0','s_cbranch_scc1 ALOOP')
    e(mfma(O+48,KV+48+8,P+8,O+48),mfma(O+48,KV+48+12,P+12,O+48),'s_waitcnt vmcnt(0)')
    stamp(e,7); stampc(e,10)
    e('s_setprio 3')
    e(f's_lshl_b32 s40, s{S_WAVE}, 12','v_lshlrev_b32 v7, 4, v0',f'v_add_u32 v6, s40, v7',f's_lshl_b32 s41, s{S_WAVE}, 14','v_add_u32 v11, s41, v7','s_nop 7')
    wait_cnt(e,C_S5,4,12,2)
    for i in range(4):
        for q in range(4): e(f'ds_write_b128 v6, {vr(O+16*i+4*q,4)} offset:{RED_BASE+i*16384+q*1024}')
    e('s_waitcnt lgkmcnt(0)'); arrive(e,C_RED); wait_cnt(e,C_RED,f's{S_RT}',13)
    for s_ in range(4):
        for q in range(4): e(f'ds_read_b128 {vr(O+16*s_+4*q,4)}, v11 offset:{RED_BASE+s_*4096+q*1024}')
    for i in range(4):
        for s_ in range(4): e(f'ds_read_b32 v{S+4*i+s_}, v7 offset:{RED_BASE+i*16384+s_*4096+3072}')
    e('s_waitcnt lgkmcnt(0)')
    for r in range(16): e(f'v_add_f32 v{O+r}, v{O+r}, v{O+16+r}',f'v_add_f32 v{O+32+r}, v{O+32+r}, v{O+48+r}')
    for r in range(16): e(f'v_add_f32 v{O+r}, v{O+r}, v{O+32+r}')
    e(f's_mov_b64 s[62:63], 0')
    for i in range(4):
        b=S+4*i
        e(f'v_add_f32 v{b}, v{b}, v{b+1}',f'v_add_f32 v{b+2}, v{b+2}, v{b+3}',f'v_add_f32 v{b}, v{b}, v{b+2}',
          f'v_cmp_nle_f32 vcc, 0x2b800000, v{b}','s_or_b64 s[62:63], s[62:63], vcc',f'v_cmp_nge_f32 vcc, 0x53800000, v{b}','s_or_b64 s[62:63], s[62:63], vcc')
    e('s_and_b64 s[62:63], s[62:63], s[54:55]',f's_add_u32 s{S_RT}, s{S_RT}, 4')
    e(f's_cmp_eq_u32 s{S_FB}, 0','s_cselect_b64 s[62:63], s[62:63], 0','s_cmp_lg_u64 s[62:63], 0','s_cbranch_scc1 FALLBACK')
    e(f'v_mov_b32 v12, v{O+12}',f'v_mov_b32 v13, v{O+12}','s_nop 1','v_permlane32_swap_b32 v12, v13','s_nop 1','v_rcp_f32 v13, v13','s_nop 0')
    for r in range(16): e(f'v_mul_f32 v{O+r}, v{O+r}, v13')
    for j in range(8): e(f'v_cvt_pk_bf16_f32 v{P+j}, v{O+2*j}, v{O+2*j+1}')
    e('v_mov_b32 v12, 0',f'v_cndmask_b32 v{P+6}, v{P+6}, v12, s[54:55]',f'v_cndmask_b32 v{P+7}, v{P+7}, v12, s[54:55]')
    e(f's_lshl_b32 s40, s{S_QT}, 2',f's_add_u32 s40, s40, s{S_WAVE}','s_lshl_b32 s40, s40, 15',f's_lshl_b32 s41, s{S_H}, 11','s_add_u32 s40, s40, s41',
      f's_add_u32 s40, s40, {O_OFF}','v_add_u32 v6, s40, v7',
      f'global_store_dwordx4 v6, {vr(P,4)}, {sp(S_WS)} sc1',f'global_store_dwordx4 v6, {vr(P+4,4)}, {sp(S_WS)} offset:1024 sc1','s_waitcnt vmcnt(0)')
    sk=e.lab('sk')
    arrive_rtn(e,C_OD,12,7,sk)
    e(f's_lshl_b32 s40, s{S_QT}, 7',f's_lshl_b32 s41, s{S_H}, 3','s_add_u32 s40, s40, s41',f's_add_u32 s40, s40, {OFLG}','v_mov_b32 v6, s40',
      f'v_mov_b32 v8, s{S_N}',f'v_mov_b32 v9, s{S_N2}','s_mov_b64 exec, 1',f'global_store_dwordx2 v6, v[8:9], {sp(S_WS)} sc1','s_mov_b64 exec, -1',f'{sk}:')
    stamp(e,8); dump_stamps(e,14,0)
    e('s_barrier','s_endpgm')
    e('FALLBACK:',f's_mov_b32 s{S_FB}, 1','v_lshlrev_b32 v7, 4, v0',f'v_add_u32 v{VK}, s61, v7',f's_mov_b32 s{S_LP}, 16')
    for i in range(4): e(f'v_mov_b32 v{P+i}, 0xff7fffff')
    e('FBL:',f'global_load_dwordx4 {vr(KV,4)}, v{VK}, {sp(S_WS)} sc1',f'global_load_dwordx4 {vr(KV+4,4)}, v{VK}, {sp(S_WS)} offset:1024 sc1',
      f'v_add_u32 v{VK}, 2048, v{VK}','s_waitcnt vmcnt(0)')
    for i in range(4):
        e(mfma(S,KV,Q+8*i),mfma(S,KV+4,Q+8*i+4,S),'s_nop 7','s_nop 7','s_nop 3')
        for r in range(0,16,2): e(f'v_max3_f32 v{P+i}, v{S+r}, v{S+r+1}, v{P+i}')
    e(f's_sub_u32 s{S_LP}, s{S_LP}, 1',f's_cmp_lg_u32 s{S_LP}, 0','s_cbranch_scc1 FBL')
    e(f's_lshl_b32 s40, s{S_WAVE}, 10','v_lshlrev_b32 v6, 2, v0','v_add_u32 v11, s40, v6')
    wait_lab=None
    arrive(e,C_FA); wait_cnt(e,C_FA,4,13)
    for i in range(4): e(f'ds_write_b32 v11, v{P+i} offset:{i*256}')
    e('s_waitcnt lgkmcnt(0)'); arrive(e,C_FA); wait_cnt(e,C_FA,8,13)
    e('v_xor_b32 v12, 128, v6')
    for i in range(4):
        for s_ in range(4):
            e(f'ds_read_b32 v{S+8*i+2*s_}, v6 offset:{s_*1024+i*256}',f'ds_read_b32 v{S+8*i+2*s_+1}, v12 offset:{s_*1024+i*256}')
    e('s_waitcnt lgkmcnt(0)'); arrive(e,C_FA); wait_cnt(e,C_FA,12,13)
    for i in range(4):
        b=S+8*i
        e(f'v_max3_f32 v{b}, v{b}, v{b+1}, v{b+2}',f'v_max3_f32 v{b}, v{b}, v{b+3}, v{b+4}',f'v_max3_f32 v{b}, v{b}, v{b+5}, v{b+6}',f'v_max_f32 v{b}, v{b}, v{b+7}',
          f'v_sub_f32 v{b}, 0, v{b}',
          f'v_cvt_pk_bf16_f32 v{b+1}, v{b}, v{b}',f'v_and_b32 v{b+1}, 0xffff0000, v{b+1}',f'v_sub_f32 v{b+2}, v{b}, v{b+1}',
          f'v_cvt_pk_bf16_f32 v{b+3}, v{b+2}, v{b+2}',f'v_and_b32 v{b+3}, 0xffff0000, v{b+3}',f'v_sub_f32 v{b+4}, v{b+2}, v{b+3}',
          f'v_cvt_pk_bf16_f32 v{b+5}, v{b+1}, v{b+3}',f'v_cvt_pk_bf16_f32 v{b+6}, v{b+4}, 0',
          f'v_cndmask_b32 v{Q+8*i+6}, v{Q+8*i+6}, v{b+5}, s[54:55]',f'v_cndmask_b32 v{Q+8*i+7}, v{Q+8*i+7}, v{b+6}, s[54:55]')
    for r in range(64): e(f'v_mov_b32 v{O+r}, 0')
    e('s_branch RERUN')
```

```python
KN='gated_mix__ssm_conv_s4d__softmax_full_mha__prompt_kernel'
class E:
    def __init__(s): s.L=[]; s.n=0
    def __call__(s,*ls):
        for l in ls:
            for x in l.split('\n'):
                x=x.strip()
                if x: s.L.append(x)
    def lab(s,p='L'):
        s.n+=1; return f'{p}_{s.n}'
def vr(a,n): return f'v[{a}:{a+n-1}]' if n>1 else f'v{a}'
def mfma(d,a,b,c=None):
    cs='0' if c is None else vr(c,16)
    return f'v_mfma_f32_32x32x16_bf16 {vr(d,16)}, {vr(a,4)}, {vr(b,4)}, {cs}'
QFLG=4096; OFLG=16384; AFLG=20480
QKV_OFF=1<<20; O_OFF=8<<20; AT_OFF=12<<20; G_OFF=15<<20
W_BASE=0; XS_BASE=86016
SCR_BASE=118784
CNT=155648
MISC=CNT+128
RED_BASE=0
KC_BASE=65536
UT_BASE=75104
T_BASE=85504
T_CH=35072
T_OFF=[0,273,549,825,1101,1365,1641,1917]
LDS_SIZE=163840
C_W0,C_W1,C_W2,C_RING,C_QD,C_RED,C_OD,C_S0,C_S1,C_S2,C_S3,C_S4,C_AD,C_FB,C_S5,C_AP,C_FA,C_SP,C_SO=range(19)
S_X,S_LA,S_AI,S_CR,S_CI,S_DT,S_DS,S_BX,S_W,S_WO,S_GW,S_OUT,S_DBG,S_WS=[4+2*i for i in range(14)]
S_WAVE=3; S_XCD=34; S_SLOT=35; S_SPIN=36; S_N=37; S_N2=38; S_T=39
V_LANE,V_L31,V_HH,V_X,V_CNT,V_ONE=0,1,2,3,4,5
def sp(a): return f's[{a}:{a+1}]'
def arrive(e,cid):
    e('s_mov_b64 exec, 1',f'ds_add_u32 v{V_CNT}, v{V_ONE} offset:{4*cid}','s_mov_b64 exec, -1')
def arrive_rtn(e,cid,vt,last,lab_skip):
    e('s_mov_b64 exec, 1',f'ds_add_rtn_u32 v{vt}, v{V_CNT}, v{V_ONE} offset:{4*cid}','s_mov_b64 exec, -1','s_waitcnt lgkmcnt(0)',
      f'v_readfirstlane_b32 s{S_T}, v{vt}',f's_cmp_eq_u32 s{S_T}, {last}',f's_cbranch_scc0 {lab_skip}')
def wait_cnt(e,cid,target,vt,sleep=0):
    l=e.lab('W'); d=e.lab('D')
    tg=target if isinstance(target,str) else str(target)
    e(f'{l}:',f'ds_read_b32 v{vt}, v{V_CNT} offset:{4*cid}','s_waitcnt lgkmcnt(0)',f'v_readfirstlane_b32 s{S_T}, v{vt}',
      f's_cmp_ge_u32 s{S_T}, {tg}',f's_cbranch_scc1 {d}')
    if sleep: e(f's_sleep {sleep}')
    e(f's_sub_u32 s{S_SPIN}, s{S_SPIN}, 1',f's_cbranch_scc0 {l}',f's_mov_b32 s{S_SPIN}, 0',f'{d}:')
def poll_flags(e,vaddr,vt,sleep=0):
    l=e.lab('P'); d=e.lab('D')
    e(f'{l}:',f'global_load_dwordx2 {vr(vt,2)}, v{vaddr}, {sp(S_WS)} sc1','s_waitcnt vmcnt(0)',
      f'v_cmp_ne_u32 vcc, s{S_N}, v{vt}',f'v_cmp_ne_u32 s[50:51], s{S_N2}, v{vt+1}','s_or_b64 vcc, vcc, s[50:51]',
      f's_cbranch_vccz {d}',*([f's_sleep {sleep}'] if sleep else []),f's_sub_u32 s{S_SPIN}, s{S_SPIN}, 1',f's_cbranch_scc0 {l}',f's_mov_b32 s{S_SPIN}, 0',f'{d}:')
def poll_one(e,vaddr,vt,cid,sw,sleep=0,lsleep=1):
    lo=e.lab('po'); ld=e.lab('pd')
    e(f's_cmp_eq_u32 s{sw}, 0',f's_cbranch_scc0 {lo}')
    poll_flags(e,vaddr,vt,sleep); arrive(e,cid); e(f's_branch {ld}',f'{lo}:')
    wait_cnt(e,cid,1,vt,lsleep); e(f'{ld}:')
def get_nonce(e):
    e(f'v_readfirstlane_b32 s{S_N}, v{V_X}',f's_mul_i32 s{S_N}, s{S_N}, 1664525',f's_add_u32 s{S_N}, s{S_N}, 1013904223',
      f's_mul_i32 s{S_N2}, s{S_N}, 0x2545F491',f's_xor_b32 s{S_N2}, s{S_N2}, 0x5bd1e995')
def prologue(e):
    e('s_cmp_ge_u32 s2, 256','s_cbranch_scc1 KEND',
      's_load_dwordx16 s[4:19], s[0:1], 0','s_load_dwordx8 s[20:27], s[0:1], 64','s_load_dwordx4 s[28:31], s[0:1], 96',
      'v_lshrrev_b32 v6, 6, v0','s_nop 0',f'v_readfirstlane_b32 s{S_WAVE}, v6','v_and_b32 v0, 63, v0','v_and_b32 v1, 31, v0','v_lshrrev_b32 v2, 5, v0',
      f'v_mov_b32 v{V_CNT}, {CNT}',f'v_mov_b32 v{V_ONE}, 1',
      f's_and_b32 s{S_XCD}, s2, 7',f's_lshr_b32 s{S_SLOT}, s2, 3',f's_mov_b32 s{S_SPIN}, 0x20000',
      'v_lshlrev_b32 v6, 2, v0',f'v_add_u32 v6, {CNT}, v6','v_mov_b32 v7, 0','v_cmp_gt_u32 vcc, 32, v0','s_and_saveexec_b64 s[50:51], vcc',
      'ds_write_b32 v6, v7','s_mov_b64 exec, -1','v_mov_b32 v6, 0','s_waitcnt lgkmcnt(0)',
      f'global_load_dword v{V_X}, v6, {sp(S_WS)} sc1',
      f's_cmp_ge_u32 s{S_WAVE}, 4','s_cbranch_scc1 SPATH')
def footer():
    return '''.section .rodata,"a"
.p2align 6
.amdhsa_kernel %s
  .amdhsa_next_free_vgpr 256
  .amdhsa_next_free_sgpr 102
  .amdhsa_accum_offset 256
  .amdhsa_group_segment_fixed_size 0
  .amdhsa_kernarg_size 112
  .amdhsa_user_sgpr_count 2
  .amdhsa_user_sgpr_kernarg_segment_ptr 1
  .amdhsa_system_sgpr_workgroup_id_x 1
.end_amdhsa_kernel
'''%KN
def header():
    return '; @launch grid=(256,1,1) block=(512,1,1) lds=%d\n.amdgcn_target "amdgcn-amd-amdhsa--gfx950"\n.text\n.globl %s\n.p2align 8\n.type %s,@function\n%s:\n'%(LDS_SIZE,KN,KN,KN)

import os
PROF=int(os.environ.get('PROF','0'))
PROF_OFF=32<<20
def stamp(e,i):
    if PROF: e(f's_memrealtime s[{66+2*i}:{67+2*i}]')
def stampc(e,i):
    if PROF: e(f's_memtime s[{66+2*i}:{67+2*i}]')
def dump_stamps(e,n,slotbase):
    if not PROF: return
    l=e.lab('pf')
    e(f's_and_b32 s40, s{S_WAVE}, 3','s_cmp_eq_u32 s40, 0',f's_cbranch_scc0 {l}','s_waitcnt lgkmcnt(0)','s_lshl_b32 s40, s2, 8',f's_add_u32 s40, s40, {PROF_OFF+slotbase*4}','v_mov_b32 v6, s40','s_mov_b64 exec, 1')
    for i in range(n): e(f'v_mov_b32 v7, s{66+2*i}',f'global_store_dword v6, v7, {sp(S_WS)} offset:{4*i}','s_nop 0')
    e('s_waitcnt vmcnt(0)','s_mov_b64 exec, -1',f'{l}:')
```

```python
from gen_common import *
import os
KC=MISC; KCP=1664; UT=65536; UTP=7680
R1=15360; R2=80896; XC3=MISC+3840-64
S_W4,S_CH,S_NH,S_D0,S_D,S_TAU,S_C4=52,53,58,59,60,61,62
HH='s[54:55]'
def cmul(e,d,a,b):
    e(f'v_pk_mul_f32 {vr(d,2)}, {vr(a,2)}, {vr(b,2)} op_sel:[0,0] op_sel_hi:[0,1]',
      f'v_pk_fma_f32 {vr(d,2)}, {vr(a,2)}, {vr(b,2)}, {vr(d,2)} op_sel:[1,1,0] op_sel_hi:[1,0,1] neg_lo:[1,0,0]')
DET=int(os.environ.get('DET','0'))
_stamp=stamp
def dstamp(e,i):
    if DET==1: _stamp(e,i)
def d2stamp(e,i):
    if DET==2: _stamp(e,i)
def stamp(e,i):
    if DET:
        m={0:0,1:1,2:2,3:9,4:10,5:11,6:12}
        if i in m: _stamp(e,m[i])
    else: _stamp(e,i)
def cmuls(e,L):
    for d,a,b in L: e(f'v_pk_mul_f32 {vr(d,2)}, {vr(a,2)}, {vr(b,2)} op_sel:[0,0] op_sel_hi:[0,1]')
    for d,a,b in L: e(f'v_pk_fma_f32 {vr(d,2)}, {vr(a,2)}, {vr(b,2)}, {vr(d,2)} op_sel:[1,1,0] op_sel_hi:[1,0,1] neg_lo:[1,0,0]')
def unpack(e,dlo,dhi,src):
    e(f'v_and_b32 v{dhi}, 0xffff0000, v{src}',f'v_lshlrev_b32 v{dlo}, 16, v{src}')
def wo_pref(e):
    l=e.lab('wp')
    e(f's_cmp_eq_u32 s{S_W4}, 1',f's_cbranch_scc0 {l}','v_min_u32 v28, 41, v0','v_mul_u32_u24 v29, 0x5556, v28','v_lshrrev_b32 v29, 16, v29','v_mul_u32_u24 v30, 3, v29','v_sub_u32 v28, v28, v30',
      'v_mul_u32_u24 v28, 110, v28',f's_mul_i32 s42, s{S_SLOT}, 14','v_add_u32 v29, s42, v29','v_mul_u32_u24 v29, 896, v29',f's_mul_i32 s42, s{S_C4}, 224','v_add3_u32 v28, v28, v29, s42',
      f'global_load_dword v247, v28, {sp(S_WO)}',f'{l}:')
def u_loads(e):
    e(f'v_lshl_add_u32 v28, s{S_W4}, 6, v0','v_mul_u32_u24 v28, 7168, v28',f's_lshl_b32 s41, s{S_D0}, 1','v_add_u32 v28, s41, v28','v_add_u32 v29, 3584, v28')
    for i in range(8): e(f'global_load_dword v{224+i}, v{28+i//4}, {sp(S_X)} offset:{896*(i&3)}')
def kgen(e):
    DT,DT2=12,13; W1,W8,W256,W2,W4,C2,ZR,ZI=14,16,18,20,22,24,26,27
    Q=32; PK=96; QF=128; PF=160; D=192; VW,VT=6,7
    e(f's_mul_i32 s40, s{S_W4}, 9216',f's_add_u32 s40, s40, {SCR_BASE}',f'v_mul_u32_u24 v{VW}, 144, v0',f'v_add_u32 v{VW}, s40, v{VW}',
      'v_lshrrev_b32 v28, 2, v0','v_and_b32 v28, 3, v28','v_lshl_add_u32 v28, v2, 2, v28','v_mul_u32_u24 v28, 144, v28',
      'v_bfe_u32 v29, v0, 4, 1','v_lshlrev_b32 v29, 5, v29','v_and_b32 v30, 3, v0','v_lshlrev_b32 v30, 3, v30','v_add3_u32 v28, v28, v29, v30',f'v_add_u32 v{VT}, s40, v28')
    e('s_waitcnt vmcnt(0)',f'v_lshlrev_b32 v{DT}, 16, v232',f'v_mul_f32 v{DT}, 0x3fb8aa3b, v{DT}',f'v_exp_f32 v{DT}, v{DT}','s_nop 0',
      f'v_cvt_pk_bf16_f32 v{DT}, v{DT}, v{DT}',f'v_lshlrev_b32 v{DT}, 16, v{DT}',f'v_add_f32 v{DT2}, v{DT}, v{DT}','v_lshlrev_b32 v233, 16, v233')
    for p in range(2):
        for i,dst in enumerate((28,29,C2,C2+1)):
            e(f'v_and_b32 v{dst}, 0xffff0000, v{8+i}' if p else f'v_lshlrev_b32 v{dst}, 16, v{8+i}')
        e('v_mul_f32 v28, 0x3fb8aa3b, v28','v_exp_f32 v28, v28',f'v_mul_f32 v{ZI}, v29, v{DT}','v_cvt_pk_bf16_f32 v28, v28, v28','v_lshlrev_b32 v28, 16, v28',
          f'v_mul_f32 v{ZR}, v28, v{DT}',f'v_mul_f32 v{ZR}, 0xbfb8aa3b, v{ZR}',f'v_mul_f32 v{ZI}, 0x3e22f983, v{ZI}',
          f'v_mul_f32 v{C2}, v{C2}, v{DT2}',f'v_mul_f32 v{C2+1}, v{C2+1}, v{DT2}')
        AN=((W1,'1.0',32,33),(W8,'0x41000000',34,35),(W256,'0x43800000',36,37))
        for w,f,a_,b_ in AN: e(f'v_mul_f32 v{a_}, {f}, v{ZR}',f'v_mul_f32 v{b_}, {f}, v{ZI}')
        for w,f,a_,b_ in AN: e(f'v_exp_f32 v{a_}, v{a_}',f'v_fract_f32 v{b_}, v{b_}')
        for w,f,a_,b_ in AN: e(f'v_cos_f32 v{w}, v{b_}',f'v_sin_f32 v{w+1}, v{b_}')
        e('s_nop 0')
        for w,f,a_,b_ in AN: e(f'v_mul_f32 v{w}, v{w}, v{a_}',f'v_mul_f32 v{w+1}, v{w+1}, v{a_}')
        e(f'v_mov_b32 v{Q}, 1.0',f'v_mov_b32 v{Q+1}, 0',f'v_mov_b32 v{Q+2}, v{W8}',f'v_mov_b32 v{Q+3}, v{W8+1}')
        cmuls(e,[(Q+4,W8,W8),(W2,W1,W1)]); cmuls(e,[(Q+6,Q+4,W8),(Q+8,Q+4,Q+4),(W4,W2,W2)])
        cmuls(e,[(Q+2*j,Q+2*(j-4),Q+8) for j in (5,6,7)])
        for j0 in range(8,32,4): cmuls(e,[(Q+2*j,Q+2*(j-4),Q+8) for j in range(j0,j0+4)])
        for k in range(16): e(f'v_cvt_pk_bf16_f32 v{PK+k}, v{Q+4*k}, v{Q+4*k+2}',f'v_cvt_pk_bf16_f32 v{PK+16+k}, v{Q+4*k+1}, v{Q+4*k+3}')
        for k in range(8): e(f'ds_write_b128 v{VW}, {vr(PK+4*k,4)} offset:{16*k}')
        for s in range(8): e(f'ds_read_b64_tr_b16 {vr(QF+4*s,2)}, v{VT} offset:{1152*s}',f'ds_read_b64_tr_b16 {vr(QF+4*s+2,2)}, v{VT} offset:{1152*s+64}')
        R=lambda r: Q+2*r
        e(f'v_mov_b32 v{R(0)}, v{C2}',f'v_mov_b32 v{R(0)+1}, v{C2+1}')
        for grp in (((1,0,W1),(8,0,W256),(2,0,W2)),((3,1,W2),(12,8,W256),(4,2,W2),(9,8,W2)),((5,3,W2),(14,12,W256),(6,4,W2),(10,9,W2),(13,12,W4)),
                    ((7,5,W2),(16,14,W256),(11,10,W2),(15,14,W4)),((17,16,W256),),((18,17,W256),),((19,18,W256),),((20,19,W256),)):
            cmuls(e,[(R(d),R(a),b) for d,a,b in grp])
        for k in range(12): e(f'v_cvt_pk_bf16_f32 v{PK+k}, v{Q+4*k}, v{Q+4*k+2}',f'v_cvt_pk_bf16_f32 v{PK+16+k}, -v{Q+4*k+1}, -v{Q+4*k+3}')
        e('s_waitcnt lgkmcnt(0)')
        for k in range(3): e(f'ds_write_b128 v{VW}, {vr(PK+4*k,4)} offset:{16*k}',f'ds_write_b128 v{VW}, {vr(PK+16+4*k,4)} offset:{64+16*k}')
        for s in range(8): e(f'ds_read_b64_tr_b16 {vr(PF+4*s,2)}, v{VT} offset:{1152*s}',f'ds_read_b64_tr_b16 {vr(PF+4*s+2,2)}, v{VT} offset:{1152*s+64}')
        e('s_waitcnt lgkmcnt(0)')
        for s in range(8): e(mfma(D,PF+4*s,QF+4*s,None if (p==0 and s==0) else D))
        dstamp(e,5+2*p)
    e('s_nop 7','s_nop 7')
    l1,l2=e.lab('k1'),e.lab('k2')
    e('v_lshlrev_b32 v28, 4, v0',f's_cmp_eq_u32 s{S_NH}, 0',f's_cbranch_scc1 {l1}','v_add_u32 v28, s40, v28')
    for q in range(3): e(f'ds_write_b128 v28, {vr(D+4*q,4)} offset:{1024*q}')
    e('s_waitcnt lgkmcnt(0)')
    la,lb=e.lab('a'),e.lab('b')
    e(f's_cmp_eq_u32 s{S_CH}, 0',f's_cbranch_scc0 {la}'); arrive(e,C_S0); e(f's_branch {l2}',f'{la}:'); arrive(e,C_S1); e(f's_branch {l2}',f'{l1}:')
    e('s_add_u32 s41, s40, 9216','v_add_u32 v28, s41, v28',f's_cmp_eq_u32 s{S_CH}, 0',f's_cbranch_scc0 {lb}')
    wait_cnt(e,C_S0,1,29); l3=e.lab('k3'); e(f's_branch {l3}',f'{lb}:'); wait_cnt(e,C_S1,1,29); e(f'{l3}:')
    for q in range(3): e(f'ds_read_b128 {vr(Q+4*q,4)}, v28 offset:{1024*q}')
    e(f's_mul_i32 s41, s{S_CH}, {KCP}',f's_add_u32 s41, s41, {KC}',
      'v_lshlrev_b32 v14, 4, v1','v_lshl_add_u32 v14, v2, 3, v14','v_add_u32 v14, s41, v14',
      'v_lshlrev_b32 v15, 3, v1','v_add_u32 v15, 512, v15','v_lshlrev_b32 v16, 2, v1','v_add_u32 v17, 896, v16','v_add_u32 v16, 768, v16','v_add_u32 v18, 4, v15',
      f'v_cndmask_b32 v15, v15, v16, {HH}',f'v_cndmask_b32 v16, v18, v17, {HH}','v_add_u32 v15, s41, v15','v_add_u32 v16, s41, v16',
      'v_lshlrev_b32 v17, 1, v1','v_add_u32 v17, 1024, v17','v_mov_b32 v18, 1344','v_mov_b32 v19, 1280','v_cmp_eq_u32 vcc, 0, v1','v_cndmask_b32 v18, v18, v19, vcc',
      f'v_cndmask_b32 v17, v17, v18, {HH}','v_add_u32 v17, s41, v17','v_mov_b32 v18, s41','v_mov_b32 v19, 0','ds_write_b32 v18, v19 offset:1288','s_waitcnt lgkmcnt(1)')
    for r in range(12): e(f'v_add_f32 v{D+r}, v{D+r}, v{Q+r}')
    for k in range(6): e(f'v_cvt_pk_bf16_f32 v{Q+k}, v{D+2*k}, v{D+2*k+1}')
    for r in range(12):
        b,off=(14,2*r) if r<4 else (15,2*(r-4)) if r<6 else (16,2*(r-6)) if r<8 else (17,64*(r-8))
        e(f'ds_write_b16{"_d16_hi" if r&1 else ""} v{b}, v{Q+r//2} offset:{off}')
    e('s_waitcnt lgkmcnt(0)'); arrive(e,C_S2); e(f'{l2}:')
def gather_addrs(e,GA):
    e(f'v_lshl_add_u32 v6, s{S_W4}, 6, v0','v_sub_u32 v6, 255, v6')
    for gi in range(2):
        e(f'v_subrev_u32 v7, {gi}, v6','v_max_i32 v8, 0, v7','v_or_b32 v8, 16, v8','v_ffbh_u32 v8, v8','v_sub_u32 v8, 27, v8',
          'v_lshlrev_b32 v9, v8, v5','v_add_u32 v9, -1, v9','v_add_u32 v10, 1, v8','v_lshlrev_b32 v11, 8, v8',f'v_add_u32 v11, {KC}, v11','v_lshlrev_b32 v12, 3, v7')
        for i in range(8):
            a=GA+8*gi+i
            e(f'v_add_u32 v13, {7-i}, v12','v_bfe_u32 v14, v13, v8, 1','v_lshl_add_u32 v13, v13, 1, v9','v_add_u32 v13, v13, v14','v_lshrrev_b32 v13, v10, v13',f'v_lshl_add_u32 v{a}, v13, 1, v11')
            if gi: e('v_cmp_gt_i32 vcc, 0, v7',f'v_mov_b32 v14, {KC+1288}',f'v_cndmask_b32 v{a}, v{a}, v14, vcc')
def tgather(e,GA):
    for ch in range(2):
        for i in range(16): e(f'ds_read_u16 v{128+16*ch+i}, v{GA+i} offset:{ch*KCP}')
    for ch in range(2):
        W,X,W_,X_=32+64*ch,40+64*ch,48+64*ch,56+64*ch; R=128+16*ch
        e('s_waitcnt lgkmcnt(%d)'%(15 if ch==0 else 0))
        for k in range(8): e(f'v_lshl_or_b32 v{W+k}, v{R+1+2*k}, 16, v{R+2*k}')
        for k in range(6): e(f'v_alignbit_b32 v{X+k}, v{W+k+1}, v{W+k}, 16',f'v_mov_b32 v{W_+k}, v{W+k+1}',f'v_alignbit_b32 v{X_+k}, v{W+k+2}, v{W+k+1}, 16')
def twrite(e):
    e(f'v_lshl_add_u32 v6, s{S_W4}, 6, v0','v_mov_b32 v28, 0','v_mov_b32 v29, 0','v_mov_b32 v30, 0','v_mov_b32 v31, 0')
    e('v_lshlrev_b32 v7, 4, v6',f'v_add_u32 v7, {T_BASE}, v7',f'v_add_u32 v8, {T_CH}, v7')
    l=e.lab('z'); e(f's_cmp_eq_u32 s{S_W4}, 3',f's_cbranch_scc0 {l}','v_bfe_u32 v13, v0, 2, 3')
    toff(e,13,9,10); e('v_and_b32 v13, 3, v0','v_add_u32 v9, v9, v13','v_lshlrev_b32 v9, 4, v9',f'v_mul_u32_u24 v13, {T_CH}, v2',f'v_add_u32 v9, v9, v13',
      f'v_add_u32 v9, {T_BASE+256*16}, v9','ds_write_b128 v9, v[28:31]',f'{l}:')
    for ch in range(2):
        W,X,W_,X_=32+64*ch,40+64*ch,48+64*ch,56+64*ch
        src={0:W,4:W+2,2:W_,6:W_+2,1:X,5:X+2,3:X_,7:X_+2}
        for t in range(8):
            s=(t+1)&7; g=1 if t==7 else 0
            e(f'ds_write_b128 v{7+ch}, {vr(src[t],4)} offset:{(T_OFF[s]+g)*16}')
    d2stamp(e,3)
    W=128
    e('v_lshlrev_b32 v7, 4, v6',f'v_add_u32 v7, {UT}, v7',
      'v_cmp_gt_u32 vcc, 160, v6','s_and_saveexec_b64 s[50:51], vcc',f'ds_write_b128 v7, v[28:31]',f'ds_write_b128 v7, v[28:31] offset:{UTP}','s_mov_b64 exec, -1')
    e('v_lshrrev_b32 v7, 2, v6','v_mul_u32_u24 v7, 80, v7','v_and_b32 v8, 3, v6','v_lshlrev_b32 v8, 4, v8',f'v_add3_u32 v7, v7, v8, s63')
    e('s_mov_b32 s40, 0x05040100','s_mov_b32 s41, 0x07060302','s_waitcnt vmcnt(0)')
    d2stamp(e,4)
    for k in range(4): e(f'v_perm_b32 v{W+k}, v{225+2*k}, v{224+2*k}, s40',f'v_perm_b32 v{W+4+k}, v{225+2*k}, v{224+2*k}, s41')
    e(f'ds_write_b128 v7, {vr(W,4)}',f'ds_write_b128 v7, {vr(W+4,4)} offset:{UTP}')
def toff(e,vs,vd,vt):
    e(f'v_add_u32 v{vt}, -1, v{vs}',f'v_and_b32 v{vt}, 3, v{vt}',f'v_mul_u32_u24 v{vt}, 3, v{vt}',f'v_cmp_eq_u32 vcc, 0, v{vs}',f'v_cndmask_b32 v{vt}, v{vt}, v{vs}, vcc',
      f'v_mul_u32_u24 v{vd}, 273, v{vs}',f'v_add_u32 v{vd}, v{vd}, v{vt}')
def conv(e):
    Y=32; RG=64
    e('v_sub_u32 v8, 0, v1','v_and_b32 v8, 7, v8'); toff(e,8,9,10)
    e('v_add_u32 v8, 7, v1','v_lshrrev_b32 v8, 3, v8','v_sub_u32 v9, v9, v8','v_add_u32 v9, v9, v2',f's_lshl_b32 s40, s{S_NH}, 1','s_add_u32 s40, s40, 256','v_add_u32 v9, s40, v9',
      'v_lshlrev_b32 v9, 4, v9',f's_mul_i32 s40, s{S_CH}, {T_CH}',f's_add_u32 s40, s40, {T_BASE-4032}','v_add_u32 v9, s40, v9',
      'v_add_u32 v8, 1, v1','v_mul_u32_u24 v8, 80, v8','v_lshl_add_u32 v8, v2, 4, v8',f's_mul_i32 s40, s{S_CH}, {UTP}',f's_lshl_b32 s41, s{S_NH}, 5','s_add_u32 s40, s40, s41',
      f's_add_u32 s40, s40, {UT}','v_add_u32 v8, s40, v8')
    def rd(d):
        b=RG+16*(d%3)
        e(f'ds_read_b128 {vr(b,4)}, v9 offset:{4032-64*d}',f'ds_read_b128 {vr(b+4,4)}, v8 offset:{(31-d)*80}',
          f'ds_read_b128 {vr(b+8,4)}, v8 offset:{(31-d)*80+2560}',f'ds_read_b128 {vr(b+12,4)}, v9 offset:{4032-64*(d+32)}')
    rd(0); rd(1)
    for d in range(32):
        if d+2<32: rd(d+2); e('s_waitcnt lgkmcnt(8)')
        elif d==30: e('s_waitcnt lgkmcnt(4)')
        else: e('s_waitcnt lgkmcnt(0)')
        b=RG+16*(d%3)
        e(mfma(Y+16,b,b+8,None if d==0 else Y+16),mfma(Y,b,b+4,None if d==0 else Y),mfma(Y+16,b+12,b+4,Y+16))
    SP2=int(os.environ.get('SP2','0'))
    if SP2: e(f's_setprio {SP2}')
    e('s_nop 7','s_nop 7')
    l=e.lab('sw'); e(f's_cmp_eq_u32 s{S_NH}, 0',f's_cbranch_scc1 {l}')
    for r in range(16): e(f'v_swap_b32 v{Y+r}, v{Y+16+r}')
    e(f'{l}:',f's_lshl_b32 s40, s{S_W4}, 12',f's_cmp_eq_u32 s{S_W4}, 3',f's_cselect_b32 s40, {XC3}, s40',
      f's_xor_b32 s41, s{S_W4}, 1','s_lshl_b32 s42, s41, 12','s_cmp_eq_u32 s41, 3',f's_cselect_b32 s41, {XC3}, s42',
      'v_lshlrev_b32 v10, 4, v0','v_add_u32 v11, s40, v10','v_add_u32 v10, s41, v10')
    wait_cnt(e,C_QD,4,12,2)
    for q in range(4): e(f'ds_write_b128 v11, {vr(Y+16+4*q,4)} offset:{1024*q}')
    e('s_waitcnt lgkmcnt(0)'); arrive(e,C_S4); wo_dma(e,0); wait_cnt(e,C_S4,4,12,1)
def conv_epi(e):
    Y=32; U=64; T=72
    for q in range(4): e(f'ds_read_b128 {vr(Y+16+4*q,4)}, v10 offset:{1024*q}')
    e(f's_mul_i32 s40, s{S_CH}, {UTP}',f's_mul_i32 s41, s{S_NH}, 2560','s_add_u32 s40, s40, s41',f's_add_u32 s40, s40, {UT+2560}',
      'v_mul_u32_u24 v8, 80, v1','v_lshl_add_u32 v8, v2, 3, v8','v_add_u32 v8, s40, v8')
    for q in range(4): e(f'ds_read_b64 {vr(U+2*q,2)}, v8 offset:{16*q}')
    e(f's_lshl_b32 s40, s{S_D}, 12',f's_lshl_b32 s41, s{S_NH}, 11','s_add_u32 s40, s40, s41',f's_add_u32 s40, s40, {AT_OFF}',
      'v_lshlrev_b32 v9, 6, v1','v_lshl_add_u32 v9, v2, 3, v9','v_add_u32 v9, s40, v9','v_mov_b32 v234, v233','s_waitcnt lgkmcnt(0)')
    for k in range(8): e(f'v_pk_add_f32 {vr(Y+2*k,2)}, {vr(Y+2*k,2)}, {vr(Y+16+2*k,2)}')
    for k in range(8): unpack(e,Y+16+2*k,Y+17+2*k,U+k)
    for k in range(8): e(f'v_pk_fma_f32 {vr(Y+2*k,2)}, {vr(Y+16+2*k,2)}, v[234:235], {vr(Y+2*k,2)} op_sel_hi:[1,0,1]')
    for k in range(8): e(f'v_cvt_pk_bf16_f32 v{U+k}, v{Y+2*k}, v{Y+2*k+1}')
    for q in range(4): e(f'global_store_dwordx2 v9, {vr(U+2*q,2)}, {sp(S_WS)} offset:{16*q} sc1')
def wo_addr(e):
    e(f's_mul_i32 s41, s{S_C4}, 224')
    for i in range(7):
        e(f'v_add_u32 v6, {64*i}, v0','v_mul_u32_u24 v7, 0x4925, v6','v_lshrrev_b32 v7, 18, v7','v_mul_u32_u24 v12, 14, v7','v_sub_u32 v6, v6, v12','v_lshlrev_b32 v6, 4, v6',
          'v_mul_u32_u24 v7, 896, v7',f'v_add3_u32 v{240+i}, v6, v7, s41')
def wo_dma(e,half):
    e(f's_mov_b32 s44, s{S_WO}',f's_mov_b32 s45, s{S_WO+1}','s_mov_b32 s46, 401408','s_mov_b32 s47, 0x20000')
    for k in range(2):
        l=e.lab('g')
        e(f's_add_u32 s42, s{S_W4}, {4*k}')
        if k==1: e('s_cmp_lt_u32 s42, 7',f's_cbranch_scc0 {l}')
        e('s_mul_i32 s48, s42, 7168',f's_add_u32 s48, s48, {R2 if half else R1}',f's_add_u32 s42, s42, {7*half}','s_mul_i32 s43, s42, 28672')
        for i in range(7): e(f's_add_u32 m0, s48, {1024*i}','s_nop 0',f'buffer_load_dwordx4 v{240+i}, s[44:47], s43 offen lds')
        e(f'{l}:')
WF=128
def OFr(f): return 64+4*f if f<16 else 192+4*(f-16)
def fr(e,f,dst,base):
    off=(28*(f//2)+16*(f&1))*224
    e(f'ds_read_b64_tr_b16 {vr(dst,2)}, v{base} offset:{off}',f'ds_read_b64_tr_b16 {vr(dst+2,2)}, v{base} offset:{off+1792}')
def wo_trbase(e,vd):
    e(f'v_lshrrev_b32 v{vd}, 2, v0',f'v_and_b32 v{vd}, 3, v{vd}',f'v_lshl_add_u32 v{vd}, v2, 2, v{vd}',f'v_mul_u32_u24 v{vd}, 224, v{vd}','v_bfe_u32 v13, v0, 4, 1','v_lshlrev_b32 v13, 5, v13',
      'v_and_b32 v12, 3, v0','v_lshlrev_b32 v12, 3, v12',f'v_add3_u32 v{vd}, v{vd}, v13, v12',f's_mul_i32 s40, s{S_W4}, 56',f's_add_u32 s40, s40, {R1}',f'v_add_u32 v{vd}, s40, v{vd}')
def r1_reads(e):
    wo_trbase(e,14)
    for f in range(16): fr(e,f,WF+4*f,14)
def spath(e):
    GA=208
    stamp(e,0)
    SPR=int(os.environ.get('SPR','0'))
    if SPR: e(f's_setprio {SPR}')
    e(f's_sub_u32 s{S_W4}, s{S_WAVE}, 4',f's_lshr_b32 s{S_CH}, s{S_W4}, 1',f's_and_b32 s{S_NH}, s{S_W4}, 1',
      f's_mul_i32 s{S_D0}, s{S_XCD}, 56',f's_lshl_b32 s40, s{S_SLOT}, 1',f's_add_u32 s{S_D0}, s{S_D0}, s40',f's_add_u32 s{S_D}, s{S_D0}, s{S_CH}',
      f's_lshr_b32 s{S_C4}, s{S_XCD}, 1',f's_and_b32 s40, s{S_XCD}, 1','s_lshl_b32 s40, s40, 5',f's_add_u32 s{S_TAU}, s40, s{S_SLOT}',
      f'v_cmp_eq_u32 {HH}, 1, v2',f's_mov_b32 s63, {UT+2560}')
    e(f's_cmp_ge_u32 s{S_SLOT}, 28','s_cbranch_scc1 SNOSSM')
    e(f's_lshl_b32 s40, s{S_D}, 9',f's_lshl_b32 s41, s{S_NH}, 8','s_add_u32 s40, s40, s41','v_lshl_add_u32 v6, v0, 2, s40',f's_lshl_b32 s41, s{S_D}, 1','v_mov_b32 v7, s41',
      f'global_load_ushort v232, v7, {sp(S_DT)}',f'global_load_ushort v233, v7, {sp(S_DS)}')
    for i,p in enumerate((S_LA,S_AI,S_CR,S_CI)): e(f'global_load_dword v{8+i}, v6, {sp(p)}')
    e('s_barrier')
    wo_addr(e)
    dstamp(e,3)
    e('s_waitcnt vmcnt(0)'); arrive(e,C_OD)
    dstamp(e,4)
    for i in range(4): e(f'v_mov_b32 v{234+i}, v{8+i}')
    gather_addrs(e,GA)
    for i in range(4): e(f'v_mov_b32 v{8+i}, v{234+i}')
    stamp(e,1)
    kgen(e)
    get_nonce(e)
    stamp(e,2)
    wait_cnt(e,C_S2,2,6,2)
    tgather(e,GA)
    dstamp(e,8)
    u_loads(e)
    wo_pref(e)
    dstamp(e,6)
    wait_cnt(e,C_RING,4,6,4)
    stamp(e,3)
    twrite(e)
    d2stamp(e,5)
    e('s_waitcnt lgkmcnt(0)'); d2stamp(e,7); arrive(e,C_S3); wait_cnt(e,C_S3,4,6,2)
    stamp(e,4)
    conv(e)
    stamp(e,5)
    conv_epi(e)
    wo_dma(e,1)
    stamp(e,6)
    sk=e.lab('sk'); s4=e.lab('s4'); s5=e.lab('s5')
    e(f's_cmp_eq_u32 s{S_W4}, 3',f's_cbranch_scc1 {s4}','s_waitcnt vmcnt(14)',f's_branch {s5}',f'{s4}:','s_waitcnt vmcnt(7)',f'{s5}:'); arrive_rtn(e,C_AD,6,3,sk)
    e(f's_mul_i32 s40, s{S_XCD}, 28',f's_add_u32 s40, s40, s{S_SLOT}','s_lshl_b32 s40, s40, 3',f's_add_u32 s40, s40, {AFLG}','v_mov_b32 v6, s40',
      f'v_mov_b32 v8, s{S_N}',f'v_mov_b32 v9, s{S_N2}','s_mov_b64 exec, 1',f'global_store_dwordx2 v6, v[8:9], {sp(S_WS)} sc1','s_mov_b64 exec, -1',f'{sk}:')
    wait_cnt(e,C_AD,4,6,1)
    r1_reads(e)
    e('s_waitcnt lgkmcnt(0)'); arrive(e,C_S5)
    e('v_mov_b32 v12, 0',f'v_cndmask_b32 v{WF+62}, v{WF+62}, v12, {HH}',f'v_cndmask_b32 v{WF+63}, v{WF+63}, v12, {HH}')
    e('s_branch SFIN','SNOSSM:','s_barrier')
    wo_addr(e); e('s_waitcnt vmcnt(0)'); arrive(e,C_OD); wo_pref(e)
    get_nonce(e); wait_cnt(e,C_RING,4,6,8)
    if int(os.environ.get('SP2','0')): e('s_setprio '+os.environ.get('SP2'))
    wo_dma(e,0); wo_dma(e,1)
    e('s_waitcnt vmcnt(0)'); arrive(e,C_S4); wait_cnt(e,C_S4,4,12,2)
    r1_reads(e); e('s_waitcnt lgkmcnt(0)'); arrive(e,C_S5)
    e('v_mov_b32 v12, 0',f'v_cndmask_b32 v{WF+62}, v{WF+62}, v12, {HH}',f'v_cndmask_b32 v{WF+63}, v{WF+63}, v12, {HH}')
    e('SFIN:')
    final(e)
def final(e):
    D=16; AV=32; RG=48
    e(f's_mul_i32 s40, s{S_C4}, 448',f's_add_u32 s40, s40, {AFLG}','v_lshl_add_u32 v6, v0, 3, s40',
      f's_lshr_b32 s41, s{S_TAU}, 2','s_mul_i32 s41, s41, 136',f's_add_u32 s41, s41, {QFLG}','v_mov_b32 v7, s41','v_cmp_gt_u32 vcc, 56, v0','v_cndmask_b32 v6, v7, v6, vcc')
    poll_one(e,6,12,C_SP,S_W4,8,4)
    stamp(e,7)
    e(f's_lshl_b32 s40, s{S_TAU}, 7',f's_add_u32 s40, s40, {G_OFF}','v_lshl_add_u32 v7, v1, 2, s40',f'global_load_dword v{D}, v7, {sp(S_WS)} sc1')
    e(f's_mul_i32 s40, s{S_C4}, 112',f's_mul_i32 s41, s{S_W4}, 28','s_add_u32 s40, s40, s41','s_lshl_b32 s40, s40, 12',f's_lshl_b32 s41, s{S_TAU}, 6','s_add_u32 s40, s40, s41',f's_add_u32 s40, s40, {AT_OFF}',
      'v_lshlrev_b32 v6, 14, v2','v_lshl_add_u32 v6, v1, 1, v6','v_add_u32 v6, s40, v6')
    for r in range(16):
        ch=8*(r//4)+r%4
        if r>=12: e(f'v_add_u32 v7, {ch*4096}, v6',f'v_subrev_u32 v12, 16384, v7',f'v_cndmask_b32 v7, v7, v12, {HH}')
        else: e(f'v_add_u32 v7, {ch*4096}, v6')
        e(f'global_load_ushort v{AV+r}, v7, {sp(S_WS)} sc1')
    l=e.lab('n0'); e('s_or_b32 s40, s2, '+f's{S_W4}','s_cmp_eq_u32 s40, 0',f's_cbranch_scc0 {l}',
      f'v_lshlrev_b32 v7, 3, v0',f'v_add_u32 v7, {QFLG}, v7','s_mov_b32 s41, 4','NQL:')
    poll_flags(e,7,12,8)
    e('v_add_u32 v7, 512, v7','s_sub_u32 s41, s41, 1','s_cmp_lg_u32 s41, 0','s_cbranch_scc1 NQL',f'{l}:')
    e('s_waitcnt vmcnt(0)')
    e(f'v_cvt_pk_bf16_f32 v{D}, v{D}, v{D}',f'v_lshlrev_b32 v{D}, 16, v{D}',f'v_mul_f32 v{D}, 0xbfb8aa3b, v{D}',f'v_exp_f32 v{D}, v{D}','s_nop 0',f'v_add_f32 v{D}, 1.0, v{D}',
      f'v_rcp_f32 v{D}, v{D}','s_nop 0',f'v_cvt_pk_bf16_f32 v{D}, v{D}, v{D}',f'v_lshlrev_b32 v8, 16, v{D}','v_sub_f32 v9, 1.0, v8','v_cvt_pk_bf16_f32 v9, v9, v9','v_lshlrev_b32 v9, 16, v9')
    for r in range(16): e(f'v_lshlrev_b32 v{AV+r}, 16, v{AV+r}')
    for r in range(0,16,2): e(f'v_pk_mul_f32 {vr(AV+r,2)}, {vr(AV+r,2)}, v[8:9] op_sel_hi:[1,0]')
    e(f's_lshr_b32 s40, s{S_TAU}, 2','s_lshl_b32 s40, s40, 7',f's_add_u32 s40, s40, {OFLG}','v_and_b32 v6, 15, v0','v_lshl_add_u32 v6, v6, 3, s40',
      f's_lshl_b32 s40, s{S_TAU}, 15',f's_add_u32 s40, s40, {O_OFF}','v_lshl_add_u32 v7, v0, 4, s40',
      f's_lshl_b32 s40, s{S_TAU}, 5','v_add_u32 v14, s40, v1','v_mul_u32_u24 v14, 896, v14',f's_mul_i32 s40, s{S_C4}, 224',f's_mul_i32 s41, s{S_W4}, 56','s_add_u32 s40, s40, s41',
      'v_lshl_add_u32 v15, v2, 3, s40','v_add_u32 v14, v14, v15')
    wo_trbase(e,11); e(f'v_add_u32 v11, {R2-R1}, v11')
    arrive(e,C_FB); wait_cnt(e,C_FB,4,12,2)
    def fr2(f): fr(e,f-16,RG+4*(f&3),11)
    for f in range(16,20): fr2(f)
    stamp(e,8)
    e('s_barrier')
    stamp(e,9)
    poll_one(e,6,12,C_SO,S_W4,0,0)
    stamp(e,10)
    for f in range(32):
        if f and f%4==0: e('v_add_u32 v7, 4096, v7')
        e(f'global_load_dwordx4 {vr(OFr(f),4)}, v7, {sp(S_WS)} offset:{1024*(f&3)} sc1')
    for f in range(32):
        e(f's_waitcnt vmcnt({31-f})')
        if f<16: e(mfma(D,WF+4*f,OFr(f),None if f==0 else D))
        else:
            rem=min(31-f,3); e(f's_waitcnt lgkmcnt({2*rem})')
            if f==31: e('v_mov_b32 v12, 0',f'v_cndmask_b32 v{RG+14}, v{RG+14}, v12, {HH}',f'v_cndmask_b32 v{RG+15}, v{RG+15}, v12, {HH}','s_nop 1')
            e(mfma(D,RG+4*(f&3),OFr(f),D))
            if f+4<32: e('s_nop 7'); fr2(f+4)
    stamp(e,11)
    e('s_nop 7','s_nop 7')
    for k in range(8): e(f'v_pk_fma_f32 {vr(D+2*k,2)}, {vr(D+2*k,2)}, v[8:9], {vr(AV+2*k,2)} op_sel:[0,1,0] op_sel_hi:[1,1,1]')
    for k in range(8): e(f'v_cvt_pk_bf16_f32 v{WF+k}, v{D+2*k}, v{D+2*k+1}')
    for q in range(4):
        if q==3: e('s_mov_b32 exec_hi, 0')
        e(f'global_store_dwordx2 v14, {vr(WF+2*q,2)}, {sp(S_OUT)} offset:{16*q}')
    e('s_mov_b64 exec, -1')
    l=e.lab('n1'); e('s_or_b32 s40, s2, '+f's{S_W4}','s_cmp_eq_u32 s40, 0',f's_cbranch_scc0 {l}','v_mov_b32 v6, 0',f'v_mov_b32 v7, s{S_N}','s_mov_b64 exec, 1',
      f'global_store_dword v6, v7, {sp(S_WS)} sc1','s_mov_b64 exec, -1',f'{l}:')
    stamp(e,12); dump_stamps(e,14,16)
```
